```python
import torch

def _softmax(x, axis=-1):
    return torch.softmax(x, dim=axis)
def _gelu(x):
    return torch.nn.functional.gelu(x, approximate="tanh")
def _silu(x):
    return torch.nn.functional.silu(x)
def _sigmoid(x):
    return torch.sigmoid(x)
def _layernorm(x, axis=-1, eps=1e-5):
    m = x.mean(dim=axis, keepdim=True)
    v = x.var(dim=axis, keepdim=True, unbiased=False)
    return (x - m) / torch.sqrt(v + eps)
def _scatter_add(tgt, idx, src, axis=0):
    return tgt.clone().index_add_(axis, idx, src)
def _segment_sum(src, seg, n):
    out = torch.zeros((n,) + src.shape[1:], dtype=src.dtype)
    return out.index_add_(0, seg, src)
def _pad(x, pw):
    flat = tuple(v for pair in reversed(pw) for v in pair)
    return torch.nn.functional.pad(x, flat)

kernel_name = 'parallel_sum__ssm_conv_s5__glu_gated_bilinear__prompt'

def setup_inputs():

    _w = (lambda a: (lambda t: t.to(torch.bfloat16) if t.is_floating_point() else t)(torch.as_tensor(a)))
    def _A_setup():
        B, S, D = 1, 2048, 640
        P = D
        Lambda_re = -0.5 * (lambda _x: torch.exp(torch.as_tensor(_x)))((lambda *s: torch.randn(*s, dtype=torch.bfloat16) * 0.2)(P))
        Lambda_im = (lambda *s: torch.randn(*s, dtype=torch.bfloat16) * 0.8)(P) * 1.0
        B_re = (lambda *s: torch.randn(*s, dtype=torch.bfloat16) * 0.2)(P, D) * (D ** -0.5)
        B_im = (lambda *s: torch.randn(*s, dtype=torch.bfloat16) * 0.2)(P, D) * (D ** -0.5)
        C_re = (lambda *s: torch.randn(*s, dtype=torch.bfloat16) * 0.2)(D, P) * (P ** -0.5)
        C_im = (lambda *s: torch.randn(*s, dtype=torch.bfloat16) * 0.2)(D, P) * (P ** -0.5)
        log_dt = (lambda *s: torch.randn(*s, dtype=torch.bfloat16) * 0.2)(P) * 0.3 - 2.0
        Dskip = (lambda *s: torch.randn(*s, dtype=torch.bfloat16) * 0.05)(D)
        return {
            "x": _w((lambda *s: torch.randn(*s, dtype=torch.bfloat16) * 0.05)(B, S, D)),
            "Lambda_re": _w(Lambda_re),
            "Lambda_im": _w(Lambda_im),
            "B_re": _w(B_re),
            "B_im": _w(B_im),
            "C_re": _w(C_re),
            "C_im": _w(C_im),
            "log_dt": _w(log_dt),
            "Dskip": _w(Dskip),
        }
    _A_in = _A_setup()

    def _B_setup():
        B, S, D, F = 1, 2048, 640, 1728
        return {
            "x": _w((lambda *s: torch.randn(*s, dtype=torch.bfloat16) * 0.05)(B, S, D)),
            "w_gate": _w((lambda *s: torch.randn(*s, dtype=torch.bfloat16) * 0.4)(D, F) * (D ** -0.5)),
            "w_up": _w((lambda *s: torch.randn(*s, dtype=torch.bfloat16) * 0.4)(D, F) * (D ** -0.5)),
            "w_down": _w((lambda *s: torch.randn(*s, dtype=torch.bfloat16) * 0.4)(F, D) * (F ** -0.5)),
        }
    _B_in = _B_setup()

    return {
        "A_x": _A_in["x"],
        "A_Lambda_re": _A_in["Lambda_re"],
        "A_Lambda_im": _A_in["Lambda_im"],
        "A_B_re": _A_in["B_re"],
        "A_B_im": _A_in["B_im"],
        "A_C_re": _A_in["C_re"],
        "A_C_im": _A_in["C_im"],
        "A_log_dt": _A_in["log_dt"],
        "A_Dskip": _A_in["Dskip"],
        "B_x": _B_in["x"],
        "B_w_gate": _B_in["w_gate"],
        "B_w_up": _B_in["w_up"],
        "B_w_down": _B_in["w_down"],
    }

def reference(A_x, A_Lambda_re, A_Lambda_im, A_B_re, A_B_im, A_C_re, A_C_im, A_log_dt, A_Dskip, B_x, B_w_gate, B_w_up, B_w_down):
    def _A_ref(x, Lambda_re, Lambda_im, B_re, B_im, C_re, C_im, log_dt, Dskip):
        Bsz, L, H = x.shape
        Lam = Lambda_re + 1j * Lambda_im
        Bmat = B_re + 1j * B_im
        Cmat = C_re + 1j * C_im
        dt = torch.exp(log_dt)
        Lam_bar = torch.exp(dt * Lam)
        B_bar = ((Lam_bar - 1.0) / Lam)[:, None] * Bmat
        Bu = torch.einsum("bld,pd->blp", x + 0j, B_bar)
        h = torch.zeros_like(Bu[:, 0, :])
        hs = []
        for t in range(L):
            h = Lam_bar[None, :] * h + Bu[:, t, :]
            hs.append(h)
        hseq = torch.stack(hs, 1)
        y = 2.0 * torch.einsum("blp,dp->bld", hseq, Cmat).real + x * Dskip[None, None, :]
        return y

    def _B_ref(x, w_gate, w_up, w_down):
        g = torch.einsum("bsd,df->bsf", x, w_gate)
        u = torch.einsum("bsd,df->bsf", x, w_up)
        h = g * u
        return torch.einsum("bsf,fd->bsd", h, w_down)

    x = A_x
    xn = _layernorm(x, axis=-1)
    return x + _A_ref(xn, A_Lambda_re, A_Lambda_im, A_B_re, A_B_im, A_C_re, A_C_im, A_log_dt, A_Dskip) + _B_ref(xn, B_w_gate, B_w_up, B_w_down)
```

```python
class Asm:
    def __init__(self):
        self.lines = []
        self.nlab = 0
    def e(self, s):
        self.lines.append("    " + s)
    def c(self, s):
        self.lines.append("    ; " + s)
    def lab(self, name):
        self.lines.append(name + ":")
    def newlab(self, pfx="L"):
        self.nlab += 1
        return f"{pfx}_{self.nlab}"
    def raw(self, s):
        self.lines.append(s)
    def text(self):
        return "\n".join(self.lines) + "\n"

def vr(b, n=1):
    return f"v{b}" if n == 1 else f"v[{b}:{b+n-1}]"
def ar(b, n=1):
    return f"a{b}" if n == 1 else f"a[{b}:{b+n-1}]"
def sr(b, n=1):
    return f"s{b}" if n == 1 else f"s[{b}:{b+n-1}]"

def srd(a, d, base_lo, base_hi, off, nbytes):
    if off:
        a.e(f"s_add_u32 s{d}, s{base_lo}, {off:#x}")
        a.e(f"s_addc_u32 s{d+1}, s{base_hi}, 0")
    else:
        a.e(f"s_mov_b32 s{d}, s{base_lo}")
        a.e(f"s_mov_b32 s{d+1}, s{base_hi}")
    a.e(f"s_mov_b32 s{d+2}, {nbytes:#x}")
    a.e(f"s_mov_b32 s{d+3}, 0x00020000")

def kernel_desc(name, vgpr, sgpr, accum):
    return f""".amdhsa_kernel {name}
  .amdhsa_next_free_vgpr {vgpr}
  .amdhsa_next_free_sgpr {sgpr}
  .amdhsa_accum_offset {accum}
  .amdhsa_group_segment_fixed_size 0
  .amdhsa_kernarg_size 128
  .amdhsa_user_sgpr_count 2
  .amdhsa_user_sgpr_kernarg_segment_ptr 1
  .amdhsa_system_sgpr_workgroup_id_x 1
  .amdhsa_float_denorm_mode_32 3
  .amdhsa_float_denorm_mode_16_64 3
.end_amdhsa_kernel
"""
```

```python
from asmlib import *
from k2 import A2_OFF, TILE_STRIDE, A2_BYTES, W2_OFF, W2_BYTES, ST_OFF, ST_BYTES, LB_OFF, STAMP_OFF
SB = 53376
G_OFF = 32768; U_OFF = 43136
BRE_OFF = 32768
TAB = 3 * SB
T_STAT = TAB; T_CS = TAB + 2048
K1_LDS = TAB + 2048 + 640
NST = 10
LB_BYTES = 10 * 8 * 64 * 16
INV2PI = 0x3e22f983
LOG2E = 0x3fb8aa3b

class Cnt:
    def __init__(self, a, name, maxv):
        self.a, self.name, self.maxv = a, name, maxv
        self.q = []
    def issue(self, tag):
        self.q.append(tag)
    def wait(self, tag):
        idx = [i for i, t in enumerate(self.q) if t == tag]
        if not idx: return
        n = len(self.q) - 1 - idx[-1]
        self.a.e(f"s_waitcnt {self.name}({min(n, self.maxv)})")
        n = min(n, self.maxv)
        self.q = self.q[len(self.q) - n:] if n else []
    def wait_all(self):
        self.a.e(f"s_waitcnt {self.name}(0)")
        self.q = []

def bf16r(a, dst, src, tmp=None):
    a.e(f"v_cvt_pk_bf16_f32 v{dst}, v{src}, v{src}")
    a.e(f"v_lshlrev_b32 v{dst}, 16, v{dst}")

def gen_abar(a, vLre, vLim, vldt, oa, t):
    a.e(f"v_lshlrev_b32 v{vLre}, 16, v{vLre}")
    a.e(f"v_lshlrev_b32 v{vLim}, 16, v{vLim}")
    a.e(f"v_lshlrev_b32 v{vldt}, 16, v{vldt}")
    a.e(f"v_mul_f32 v{t}, {LOG2E:#x}, v{vldt}")
    a.e(f"v_exp_f32 v{t}, v{t}")
    a.e("s_nop 0")
    bf16r(a, t, t)
    a.e(f"v_mul_f32 v{t+1}, v{t}, v{vLre}")
    a.e(f"v_mul_f32 v{t+2}, v{t}, v{vLim}")
    a.e(f"v_mul_f32 v{t+1}, {LOG2E:#x}, v{t+1}")
    a.e(f"v_exp_f32 v{t+1}, v{t+1}")
    a.e(f"v_mul_f32 v{t+2}, {INV2PI:#x}, v{t+2}")
    a.e(f"v_fract_f32 v{t+2}, v{t+2}")
    a.e(f"v_cos_f32 v{t+3}, v{t+2}")
    a.e(f"v_sin_f32 v{t+2}, v{t+2}")
    a.e("s_nop 0")
    a.e(f"v_mul_f32 v{oa}, v{t+1}, v{t+3}")
    a.e(f"v_mul_f32 v{oa+1}, v{t+1}, v{t+2}")

def csq(a, d, s, t):
    a.e(f"v_mul_f32 v{t}, v{s+1}, v{s+1}")
    a.e(f"v_mul_f32 v{t+1}, v{s}, v{s+1}")
    a.e(f"v_fma_f32 v{d}, v{s}, v{s}, -v{t}")
    a.e(f"v_add_f32 v{d+1}, v{t+1}, v{t+1}")

def gen_k1(a, name, stamp=False, prio=0):
    a.raw(f".globl {name}\n.p2align 8\n.type {name},@function")
    a.lab(name)
    done = f"{name}_done"
    L = lambda s: f"{name}_{s}"
    a.e("s_cmp_ge_u32 s2, 256")
    a.e(f"s_cbranch_scc1 {done}")
    a.e("s_load_dwordx16 s[16:31], s[0:1], 0")
    a.e("s_load_dwordx8 s[32:39], s[0:1], 80")
    a.e("s_load_dwordx4 s[40:43], s[0:1], 112")
    if stamp: a.e("s_memrealtime s[84:85]")
    P_X, P_LRE, P_LIM, P_BRE, P_BIM, P_CRE, P_CIM, P_LDT = 16, 18, 20, 22, 24, 26, 28, 30
    P_WG, P_WU, P_WD, P_OUT, P_DBG, P_WS = 32, 34, 36, 38, 40, 42
    S_X, S_WB, S_A2, S_W2, S_1, S_2, S_3, S_4, S_5 = 44, 48, 52, 56, 60, 64, 68, 72, 76
    a.e("s_and_b32 s3, s2, 7")
    a.e("s_lshr_b32 s4, s2, 3")
    a.e("s_and_b32 s6, s3, 1")
    a.e("s_lshl_b32 s6, s6, 2")
    a.e("s_and_b32 s8, s4, 3")
    a.e("s_add_u32 s6, s6, s8")
    a.e("s_lshr_b32 s7, s3, 1")
    a.e("s_lshl_b32 s7, s7, 3")
    a.e("s_lshr_b32 s8, s4, 2")
    a.e("s_add_u32 s7, s7, s8")
    a.e("v_lshrrev_b32 v2, 6, v0")
    a.e("v_and_b32 v1, 63, v0")
    a.e("v_readfirstlane_b32 s5, v2")
    a.e("s_sub_u32 s9, s7, 10")
    a.e("s_mul_i32 s9, s9, 80")
    a.e("s_min_u32 s9, s9, 1648")
    a.e("s_lshr_b32 s10, s9, 4")
    a.e("s_waitcnt lgkmcnt(0)")
    srd(a, S_X, P_X, P_X + 1, 0, 2048 * 1280)
    srd(a, S_A2, P_WS, P_WS + 1, A2_OFF, A2_BYTES)
    srd(a, S_W2, P_WS, P_WS + 1, W2_OFF, W2_BYTES)
    a.e("s_cmp_ge_u32 s5, 4")
    a.e(f"s_cbranch_scc1 {L('helper')}")
    if prio: a.e(f"s_setprio {prio}")
    a.e("s_cmp_lt_u32 s7, 10")
    a.e(f"s_cbranch_scc1 {L('cssm')}")

    def stamp_at(k):
        if stamp: a.e(f"s_memrealtime s[{84+2*k}:{85+2*k}]")
    def stamp_out():
        if not stamp: return
        a.e("s_waitcnt vmcnt(0)")
        a.e("s_memrealtime s[98:99]")
        a.e("s_waitcnt lgkmcnt(0)")
        srd(a, S_5, P_WS, P_WS + 1, STAMP_OFF + (1 << 19), 1 << 19)
        for k in range(8):
            a.e(f"v_mov_b32 v{8+k}, s{84+2*k}")
        a.e("s_lshl_b32 s80, s2, 8")
        a.e("s_lshl_b32 s81, s5, 5")
        a.e("s_add_u32 s80, s80, s81")
        a.e("v_mov_b32 v3, s80")
        a.e(f"buffer_store_dwordx4 v[8:11], v3, {sr(S_5,4)}, 0 offen")
        a.e(f"buffer_store_dwordx4 v[12:15], v3, {sr(S_5,4)}, 0 offen offset:16")

    def frag_addrs(dst, vrow, base_add, three=False):
        a.e(f"v_bfe_u32 v4, v{vrow}, 1, 2")
        a.e(f"v_bfe_u32 v5, v{vrow}, 4, 1")
        a.e("v_lshl_or_b32 v4, v5, 2, v4")
        a.e("v_xor_b32 v4, v4, v2")
        a.e(f"v_lshlrev_b32 v5, 7, v{vrow}")
        if base_add: a.e(f"v_add_u32 v5, {base_add}, v5")
        for kk in range(4):
            a.e(f"v_xor_b32 v6, {2*kk}, v4")
            a.e(f"v_lshl_add_u32 v{dst+kk}, v6, 4, v5")
            if three:
                a.e(f"v_add_u32 v{dst+4+kk}, {SB:#x}, v{dst+kk}")
                a.e(f"v_add_u32 v{dst+8+kk}, {2*SB:#x}, v{dst+kk}")
            else:
                a.e(f"v_add_u32 v{dst+4+kk}, {2*SB:#x}, v{dst+kk}")

    def main_loop(glu):
        lg = Cnt(a, "lgkmcnt", 15)
        NU = 5 if glu else 4
        FSZ = 8 + 4 * NU
        FR = 32
        XA, WA = 8, 16
        ACC = 96 if glu else 128
        def reads(step):
            s, kk = step >> 2, step & 3
            b = s % 3
            fb = FR + FSZ * (step & 1)
            boff = (b * SB) if b < 2 else 0
            xa = XA + kk + (4 if b == 2 else 0)
            istr = 4096 if glu else 1024
            out = []
            def X(i): out.append((f"ds_read_b128 {vr(fb+4*i,4)}, v{xa} offset:{boff + i*istr}", (step, 'x', i)))
            def W(u):
                if glu:
                    wa = WA + (1 if b == 2 else 0)
                    o = boff + kk * 2560 + u * 32
                    out.append((f"ds_read_b64_tr_b16 {vr(fb+8+4*u,2)}, v{wa} offset:{o}", (step, 'w', u)))
                    out.append((f"ds_read_b64_tr_b16 {vr(fb+8+4*u+2,2)}, v{wa} offset:{o+640}", (step, 'w', u)))
                else:
                    wa = WA + kk + 4 * b
                    o = (u & 1) * 8192 + (u >> 1) * 4096
                    out.append((f"ds_read_b128 {vr(fb+8+4*u,4)}, v{wa} offset:{o}", (step, 'w', u)))
            X(0); W(0); X(1)
            for u in range(1, NU): W(u)
            return out
        a.e("s_barrier")
        stamp_at(1)
        for ins, tag in reads(0):
            a.e(ins); lg.issue(tag)
        NS = 4 * NST
        for step in range(NS):
            s, kk = step >> 2, step & 3
            fb = FR + FSZ * (step & 1)
            nxt = reads(step + 1) if step + 1 < NS else []
            need_bar = (kk == 3 and s < NST - 1)
            nm = 2 * NU
            start_rd = 2 if need_bar else 0
            ri = 0
            for mi in range(nm):
                u, i = mi >> 1, mi & 1
                lg.wait((step, 'x', i)); lg.wait((step, 'w', u))
                acc = vr(ACC + 16 * (u * 2 + i), 16)
                cin = "0" if step == 0 else acc
                if glu:
                    a.e(f"v_mfma_f32_32x32x16_bf16 {acc}, {vr(fb+8+4*u,4)}, {vr(fb+4*i,4)}, {cin}")
                else:
                    a.e(f"v_mfma_f32_32x32x16_bf16 {acc}, {vr(fb+4*i,4)}, {vr(fb+8+4*u,4)}, {cin}")
                if need_bar and mi == start_rd - 1:
                    lg.wait_all() if lg.q else None
                    a.e("s_barrier")
                if mi >= start_rd:
                    rem_m = nm - 2 - mi
                    rem_r = len(nxt) - ri
                    k = rem_r if rem_m <= 0 else -(-rem_r // (rem_m + 1))
                    for _ in range(k):
                        ins, tag = nxt[ri]; a.e(ins); lg.issue(tag); ri += 1
            assert ri == len(nxt)
            if step == 19: stamp_at(2)
        stamp_at(3)
        a.e("s_barrier")
        return ACC

    a.c("================ compute GLU")
    a.e("v_lshrrev_b32 v2, 5, v1")
    a.e("v_and_b32 v3, 31, v1")
    a.e("s_lshl_b32 s11, s5, 6")
    a.e("v_add_u32 v3, s11, v3")
    frag_addrs(8, 3, 0)
    a.e("v_bfe_u32 v4, v1, 4, 1")
    a.e(f"v_mul_u32_u24 v4, {U_OFF-G_OFF}, v4")
    a.e("v_bfe_u32 v5, v1, 2, 2")
    a.e("v_lshl_add_u32 v5, v2, 3, v5")
    a.e("v_mul_u32_u24 v5, 160, v5")
    a.e("v_and_b32 v6, 3, v1")
    a.e("v_lshl_add_u32 v5, v6, 3, v5")
    a.e("v_add3_u32 v16, v4, v5, s3")
    a.lines.pop()
    a.e("v_add_u32 v16, v4, v5")
    a.e(f"v_add_u32 v16, {G_OFF}, v16")
    a.e(f"v_add_u32 v17, {2*SB:#x}, v16")
    a.e("v_bfe_u32 v4, v1, 4, 1")
    a.e(f"v_mul_u32_u24 v18, {TILE_STRIDE}, v4")
    a.e("v_lshl_add_u32 v18, v2, 8, v18")
    a.e("v_and_b32 v4, 15, v1")
    a.e("v_lshl_add_u32 v18, v4, 4, v18")
    a.e(f"v_lshlrev_b32 v19, 3, v3")
    a.e(f"v_add_u32 v19, {T_STAT:#x}, v19")
    a.e(f"v_lshlrev_b32 v20, 4, v2")
    a.e(f"v_add_u32 v20, {T_CS:#x}, v20")
    a.e("s_lshl_b32 s12, s6, 4")
    a.e("s_lshl_b32 s13, s5, 2")
    a.e("s_add_u32 s12, s12, s13")
    a.e(f"s_mul_i32 s12, s12, {TILE_STRIDE}")
    a.e("s_lshl_b32 s13, s10, 9")
    a.e("s_add_u32 s12, s12, s13")
    a.e(f"s_add_u32 s12, s12, {40*1024}")
    a.e(f"s_add_u32 s13, s12, {2*TILE_STRIDE}")
    ACC = main_loop(True)
    a.e("ds_read_b64 v[22:23], v19")
    a.e("ds_read_b64 v[24:25], v19 offset:256")
    CS = 32
    for u in range(5):
        for q in range(2):
            a.e(f"ds_read_b128 {vr(CS+16*u+4*q,4)}, v20 offset:{(16*u+8*q)*4}")
            a.e(f"ds_read_b128 {vr(CS+16*u+8+4*q,4)}, v20 offset:{320+(16*u+8*q)*4}")
        if u == 2:
            pass
    return_marker = len(a.lines)
    del a.lines[return_marker-20:return_marker]
    lg = Cnt(a, "lgkmcnt", 15)
    lg.issue('st'); lg.issue('st')
    def cs_reads(u):
        b = CS + 16 * (u % 3)
        for q in range(2):
            a.e(f"ds_read_b128 {vr(b+4*q,4)}, v20 offset:{(16*u+8*q)*4}"); lg.issue(('cs', u))
            a.e(f"ds_read_b128 {vr(b+8+4*q,4)}, v20 offset:{320+(16*u+8*q)*4}"); lg.issue(('cs', u))
    cs_reads(0); cs_reads(1)
    lg.wait('st')
    a.e("v_mul_f32 v23, v23, v23")
    a.e("v_mul_f32 v25, v25, v25")
    OUT = 80
    oi = 0
    for u in range(5):
        if u + 2 < 5: cs_reads(u + 2)
        lg.wait(('cs', u))
        b = CS + 16 * (u % 3)
        for i in range(2):
            A_ = ACC + 16 * (u * 2 + i)
            st = 22 + 2 * i
            for r in range(0, 16, 2):
                a.e(f"v_pk_fma_f32 {vr(A_+r,2)}, {vr(st,2)}, {vr(b+r,2)}, {vr(A_+r,2)} op_sel:[0,0,0] op_sel_hi:[0,1,1] neg_lo:[1,0,0] neg_hi:[1,0,0]")
            for r in range(0, 8, 2):
                a.e(f"v_pk_mul_f32 {vr(A_+r,2)}, {vr(A_+r,2)}, {vr(A_+8+r,2)}")
            for r in range(0, 8, 2):
                a.e(f"v_pk_mul_f32 {vr(A_+r,2)}, {vr(A_+r,2)}, {vr(st,2)} op_sel:[0,1] op_sel_hi:[1,1]")
            o = OUT + 4 * (oi % 4); oi += 1
            for r in range(4):
                a.e(f"v_cvt_pk_bf16_f32 v{o+r}, v{A_+2*r}, v{A_+2*r+1}")
            a.e(f"buffer_store_dwordx4 {vr(o,4)}, v18, {sr(S_A2,4)}, s{12+i} offen offset:{u*512}")
    stamp_at(4)
    stamp_out()
    a.e("s_endpgm")

    a.lab(L('cssm'))
    a.c("================ compute SSM")
    srd(a, S_1, P_LRE, P_LRE + 1, 0, 1280)
    srd(a, S_2, P_LIM, P_LIM + 1, 0, 1280)
    srd(a, S_3, P_LDT, P_LDT + 1, 0, 1280)
    srd(a, S_4, P_WS, P_WS + 1, LB_OFF, LB_BYTES)
    srd(a, S_5, P_DBG, P_DBG + 1, 0, 256)
    a.e("v_lshrrev_b32 v2, 5, v1")
    a.e("v_and_b32 v7, 31, v1")
    a.e("s_lshl_b32 s11, s7, 6")
    a.e("v_add_u32 v3, s11, v7")
    a.e("v_lshlrev_b32 v3, 1, v3")
    PRM = 80
    for P in range(2):
        a.e(f"buffer_load_ushort v{PRM+3*P}, v3, {sr(S_1,4)}, 0 offen offset:{64*P}")
        a.e(f"buffer_load_ushort v{PRM+3*P+1}, v3, {sr(S_2,4)}, 0 offen offset:{64*P}")
        a.e(f"buffer_load_ushort v{PRM+3*P+2}, v3, {sr(S_3,4)}, 0 offen offset:{64*P}")
    a.e("s_mov_b32 s15, 0")
    a.e("s_cmp_lg_u32 s5, 0")
    a.e(f"s_cbranch_scc1 {L('nononce')}")
    a.e("s_memrealtime s[82:83]")
    a.e("s_waitcnt lgkmcnt(0)")
    a.e("s_or_b32 s14, s82, 1")
    a.e("v_mov_b32 v4, s14")
    a.e("v_mov_b32 v5, 0")
    a.e("v_mov_b32 v6, 0")
    a.e("s_mov_b64 exec, 1")
    a.e(f"buffer_atomic_cmpswap v[4:5], v6, {sr(S_5,4)}, 0 offen sc0")
    a.e("s_waitcnt vmcnt(0)")
    a.e("s_mov_b64 exec, -1")
    a.e("v_readfirstlane_b32 s15, v4")
    a.e("s_nop 3")
    a.e("s_cmp_eq_u32 s15, 0")
    a.e("s_cselect_b32 s15, s14, s15")
    a.lab(L('nononce'))
    a.e("v_bfe_u32 v3, v7, 2, 1")
    a.e("v_lshlrev_b32 v3, 5, v3")
    a.e("v_and_b32 v4, 1, v7")
    a.e("v_lshl_or_b32 v3, v4, 4, v3")
    a.e("v_bfe_u32 v4, v7, 3, 2")
    a.e("v_lshl_or_b32 v3, v4, 1, v3")
    a.e("v_bfe_u32 v4, v7, 1, 1")
    a.e("v_or_b32 v3, v3, v4")
    a.e("s_lshl_b32 s11, s5, 6")
    a.e("v_add_u32 v3, s11, v3")
    frag_addrs(8, 3, 0)
    frag_addrs(16, 7, BRE_OFF, three=True)
    a.e("s_waitcnt vmcnt(0)")
    AC = 88
    for P in range(2):
        o = AC + 8 * P
        gen_abar(a, PRM + 3 * P, PRM + 3 * P + 1, PRM + 3 * P + 2, o, 28)
        csq(a, o + 2, o, 28)
        for _ in range(3): csq(a, o + 2, o + 2, 28)
        csq(a, o + 4, o + 2, 28)
        for _ in range(3): csq(a, o + 4, o + 4, 28)
    a.e("v_cmp_eq_u32 vcc, 1, v2")
    a.e("s_nop 1")
    for k in range(4):
        a.e(f"v_cndmask_b32 v{104+k}, v{AC+2+k}, v{AC+8+2+k}, vcc")
    a.e("s_lshl_b32 s11, s5, 8")
    a.e("v_lshl_add_u32 v108, v2, 7, s11")
    a.e(f"v_add_u32 v108, {T_STAT:#x}, v108")
    a.e("v_lshlrev_b32 v109, 2, v7")
    a.e(f"v_add_u32 v109, {T_CS:#x}, v109")
    a.e("s_lshl_b32 s11, s5, 4")
    a.e("v_lshl_add_u32 v110, v2, 3, s11")
    a.e("v_lshl_add_u32 v110, v7, 6, v110")
    a.e("v_lshlrev_b32 v111, 6, v1")
    IMG = 16384
    a.e(f"s_mul_i32 s11, s5, 18432")
    a.e(f"s_add_u32 s11, s11, {IMG}")
    a.e("v_mul_u32_u24 v112, 144, v7")
    a.e("v_lshl_add_u32 v112, v2, 6, v112")
    a.e("v_add_u32 v112, s11, v112")
    a.e("v_lshrrev_b32 v4, 4, v1")
    a.e("v_bfe_u32 v5, v1, 2, 2")
    a.e("v_lshl_add_u32 v4, v4, 3, v5")
    a.e("v_mul_u32_u24 v113, 144, v4")
    a.e("v_and_b32 v4, 3, v1")
    a.e("v_lshl_add_u32 v113, v4, 3, v113")
    a.e("v_add_u32 v113, s11, v113")
    a.e("v_lshlrev_b32 v114, 4, v1")
    a.e("s_lshl_b32 s12, s6, 4")
    a.e("s_lshl_b32 s13, s5, 2")
    a.e("s_add_u32 s12, s12, s13")
    a.e(f"s_mul_i32 s12, s12, {TILE_STRIDE}")
    a.e("s_lshl_b32 s13, s7, 11")
    a.e("s_add_u32 s12, s12, s13")
    ACC = main_loop(False)
    accr = lambda P, pl, i: ACC + 16 * ((P * 2 + pl) * 2 + i)
    MEAN, RSTD = 16, 48
    for k in range(8):
        a.e(f"ds_read_b128 {vr(MEAN+4*k,4)}, v108 offset:{16*k}")
    for k in range(4):
        a.e(f"ds_read_b32 v{80+k}, v109 offset:{(k&1)*256 + (k>>1)*128}")
    a.e("s_waitcnt lgkmcnt(0)")
    for k in range(8):
        a.e(f"ds_read_b128 {vr(RSTD+4*k,4)}, v108 offset:{1024+16*k}")
    for P in range(2):
        for pl in range(2):
            for i in range(2):
                A_ = accr(P, pl, i)
                for r in range(0, 16, 2):
                    a.e(f"v_pk_fma_f32 {vr(A_+r,2)}, {vr(MEAN+16*i+r,2)}, {vr(80+2*P,2)}, {vr(A_+r,2)} op_sel:[0,{pl},0] op_sel_hi:[1,{pl},1] neg_lo:[1,0,0] neg_hi:[1,0,0]")
    a.e("s_waitcnt lgkmcnt(0)")
    H = 8
    T = 116
    def scan_step(P, ure, uim, hre, him, dre, dim):
        ap = vr(AC + 8 * P, 2)
        t0, t1 = T + 4 * P, T + 4 * P + 2
        a.e(f"v_pk_fma_f32 {vr(t0,2)}, {ap}, {vr(him,2)}, {vr(ure,2)} op_sel:[1,0,0] op_sel_hi:[1,1,1] neg_lo:[1,0,0] neg_hi:[1,0,0]")
        a.e(f"v_pk_fma_f32 {vr(t1,2)}, {ap}, {vr(hre,2)}, {vr(uim,2)} op_sel:[1,0,0] op_sel_hi:[1,1,1]")
        return [f"v_pk_fma_f32 {vr(dre,2)}, {ap}, {vr(hre,2)}, {vr(t0,2)} op_sel:[0,0,0] op_sel_hi:[0,1,1]",
                f"v_pk_fma_f32 {vr(dim,2)}, {ap}, {vr(him,2)}, {vr(t1,2)} op_sel:[0,0,0] op_sel_hi:[0,1,1]"]
    for i in range(2):
        for pi in range(8):
            r = 2 * pi
            for P in range(2):
                for pl in range(2):
                    A_ = accr(P, pl, i) + r
                    a.e(f"v_pk_mul_f32 {vr(A_,2)}, {vr(A_,2)}, {vr(RSTD+16*i+r,2)}")
            if i == 0 and pi == 0:
                continue
            post = []
            for P in range(2):
                if i == 0 and pi == 1:
                    hre, him = accr(P, 0, 0), accr(P, 1, 0)
                else:
                    hre, him = H + 4 * P, H + 4 * P + 2
                post += scan_step(P, accr(P, 0, i) + r, accr(P, 1, i) + r, hre, him, H + 4 * P, H + 4 * P + 2)
            for x in post: a.e(x)
    for P in range(2):
        a.e(f"ds_write_b64 v110, {vr(H+4*P,2)} offset:{P*2048}")
        a.e(f"ds_write_b64 v110, {vr(H+4*P+2,2)} offset:{4096+P*2048}")
    a.e("s_waitcnt lgkmcnt(0)")
    a.e("s_barrier")
    stamp_at(4)
    a.e("s_cmp_lg_u32 s5, 0")
    a.e(f"s_cbranch_scc1 {L('ssm_wait')}")
    ER, EI = 16, 32
    CR, CI = 48, 64
    for k in range(4):
        a.e(f"ds_read_b128 {vr(ER+4*k,4)}, v111 offset:{16*k}")
        a.e(f"ds_read_b128 {vr(EI+4*k,4)}, v111 offset:{4096+16*k}")
    a.e("s_waitcnt lgkmcnt(0)")
    def cfma(dr, di, ar_, hr, hi, ur, ui, t):
        a.e(f"v_fma_f32 v{t}, -v{ar_+1}, v{hi}, v{ur}")
        a.e(f"v_fma_f32 v{t+1}, v{ar_+1}, v{hr}, v{ui}")
        a.e(f"v_fma_f32 v{dr}, v{ar_}, v{hr}, v{t}")
        a.e(f"v_fma_f32 v{di}, v{ar_}, v{hi}, v{t+1}")
    cfma(8, 10, 104, ER, EI, ER + 1, EI + 1, T)
    for j in range(2, 16):
        cfma(8, 10, 104, 8, 10, ER + j, EI + j, T)
    a.e("v_mov_b32 v9, s15")
    a.e("v_mov_b32 v11, s15")
    a.e("s_lshl_b32 s13, s7, 13")
    a.e("s_lshl_b32 s14, s6, 10")
    a.e("s_add_u32 s14, s14, s13")
    a.e(f"buffer_store_dwordx4 v[8:11], v114, {sr(S_4,4)}, s14 offen sc1")
    a.e(f"v_mov_b32 v{CR}, 0")
    a.e(f"v_mov_b32 v{CI}, 0")
    a.e("s_cmp_eq_u32 s6, 0")
    a.e(f"s_cbranch_scc1 {L('lb_done')}")
    a.e("s_mov_b32 s80, 0")
    a.lab(L('poll'))
    G = 49
    GB = [52, 56, 60, 68, 72, 76, 12]
    for j in range(7):
        a.e(f"buffer_load_dwordx4 {vr(GB[j],4)}, v114, {sr(S_4,4)}, s13 offen offset:{(j&3)*1024} sc1" if j < 4 else
            f"buffer_load_dwordx4 {vr(GB[j],4)}, v114, {sr(S_4,4)}, s81 offen offset:{(j&3)*1024} sc1")
        if j == 0: a.e("s_add_u32 s81, s13, 4096")
    a.e("s_waitcnt vmcnt(0)")
    a.e("s_mov_b64 s[82:83], 0")
    for j in range(7):
        a.e(f"s_cmp_le_u32 s6, {j}")
        a.e(f"s_cbranch_scc1 {L('chk_end')}")
        a.e(f"v_cmp_ne_u32 vcc, s15, v{GB[j]+1}")
        a.e("s_or_b64 s[82:83], s[82:83], vcc")
        a.e(f"v_cmp_ne_u32 vcc, s15, v{GB[j]+3}")
        a.e("s_or_b64 s[82:83], s[82:83], vcc")
    a.lab(L('chk_end'))
    a.e("s_cmp_eq_u64 s[82:83], 0")
    a.e(f"s_cbranch_scc1 {L('poll_ok')}")
    a.e("s_add_u32 s80, s80, 1")
    a.e("s_cmp_lt_u32 s80, 0x40000")
    a.e(f"s_cbranch_scc0 {L('poll_ok')}")
    a.e("s_sleep 1")
    a.e(f"s_branch {L('poll')}")
    a.lab(L('poll_ok'))
    for j in range(7):
        a.e(f"s_cmp_le_u32 s6, {j}")
        a.e(f"s_cbranch_scc1 {L('lb_done')}")
        cfma(CR, CI, 106, CR, CI, GB[j], GB[j] + 2, T)
    a.lab(L('lb_done'))
    stamp_at(5)
    for j in range(15):
        cfma(CR + j + 1, CI + j + 1, 104, CR + j, CI + j, ER + j, EI + j, T)
    for k in range(4):
        a.e(f"ds_write_b128 v111, {vr(CR+4*k,4)} offset:{8192+16*k}")
        a.e(f"ds_write_b128 v111, {vr(CI+4*k,4)} offset:{12288+16*k}")
    a.e("s_waitcnt lgkmcnt(0)")
    a.lab(L('ssm_wait'))
    a.e("s_barrier")
    for P in range(2):
        a.e(f"ds_read_b64 {vr(H+4*P,2)}, v110 offset:{8192+P*2048}")
        a.e(f"ds_read_b64 {vr(H+4*P+2,2)}, v110 offset:{12288+P*2048}")
    a.e("s_waitcnt lgkmcnt(0)")
    for i in range(2):
        for pi in range(8):
            r = 2 * pi
            post = []
            for P in range(2):
                if i == 0 and pi == 0:
                    hre, him = H + 4 * P, H + 4 * P + 2
                elif pi == 0:
                    hre, him = accr(P, 0, 0) + 14, accr(P, 1, 0) + 14
                else:
                    hre, him = accr(P, 0, i) + r - 2, accr(P, 1, i) + r - 2
                post += scan_step(P, accr(P, 0, i) + r, accr(P, 1, i) + r, hre, him, accr(P, 0, i) + r, accr(P, 1, i) + r)
            for x in post: a.e(x)
        ob = 16
        for P in range(2):
            for pl in range(2):
                for e_ in range(2):
                    A_ = accr(P, pl, i)
                    o = ob + 4 * ((P * 2 + pl) * 2 + e_) + 32 * i
                    for k in range(4):
                        a.e(f"v_cvt_pk_bf16_f32 v{o+k}, v{A_+4*k+e_}, v{A_+4*k+2+e_}")
                    a.e(f"ds_write_b128 v112, {vr(o,4)} offset:{pl*9216 + P*32*144 + 32*e_ + 16*i}")
    a.e("s_waitcnt lgkmcnt(0)")
    R = 128
    n = 0
    lg = Cnt(a, "lgkmcnt", 15)
    fr = []
    for tq in range(4):
        for pl in range(2):
            for P in range(2):
                o = pl * 9216 + P * 32 * 144 + tq * 32
                rr = R + 4 * n
                a.e(f"ds_read_b64_tr_b16 {vr(rr,2)}, v113 offset:{o}"); lg.issue(n)
                a.e(f"ds_read_b64_tr_b16 {vr(rr+2,2)}, v113 offset:{o+576}"); lg.issue(n)
                fr.append((n, rr, tq, pl, P)); n += 1
                if n >= 4:
                    m, r2, tq2, pl2, P2 = fr.pop(0)
                    lg.wait(m)
                    if pl2 == 0 and P2 == 0:
                        a.e(f"s_add_u32 s13, s12, {tq2*TILE_STRIDE}")
                        a.e(f"s_add_u32 s14, s13, {20*1024}")
                    a.e(f"buffer_store_dwordx4 {vr(r2,4)}, v114, {sr(S_A2,4)}, s{13+pl2} offen offset:{P2*1024}")
    for m, r2, tq2, pl2, P2 in fr:
        lg.wait(m)
        if pl2 == 0 and P2 == 0:
            a.e(f"s_add_u32 s13, s12, {tq2*TILE_STRIDE}")
            a.e(f"s_add_u32 s14, s13, {20*1024}")
        a.e(f"buffer_store_dwordx4 {vr(r2,4)}, v114, {sr(S_A2,4)}, s{13+pl2} offen offset:{P2*1024}")
    stamp_at(6)
    stamp_out()
    a.e("s_endpgm")

    a.lab(L('helper'))
    a.c("================ helper common")
    a.e("s_sub_u32 s5, s5, 4")
    srd(a, S_1, P_WD, P_WD + 1, 0, 1728 * 1280)
    srd(a, S_2, P_CRE, P_CRE + 1, 0, 640 * 1280)
    srd(a, S_3, P_CIM, P_CIM + 1, 0, 640 * 1280)
    a.e("v_lshrrev_b32 v2, 3, v1")
    a.e("s_lshl_b32 s11, s5, 6")
    a.e("v_add_u32 v3, s11, v2")
    a.e("v_mul_u32_u24 v3, 1280, v3")
    a.e("v_bfe_u32 v4, v1, 4, 2")
    a.e("v_and_b32 v5, 7, v1")
    a.e("v_xor_b32 v4, v4, v5")
    a.e("v_xor_b32 v5, 4, v4")
    a.e("v_lshl_add_u32 v6, v4, 4, v3")
    a.e("v_lshl_add_u32 v7, v5, 4, v3")
    for j in range(8):
        a.e(f"v_add_u32 v{8+j}, {j*10240 - (j&3)*1024}, v{6 if not (j>>1)&1 else 7}")
    a.e(f"s_mul_i32 s12, s6, {256*1280}")
    a.e("s_lshl_b32 s13, s5, 13")
    a.e("v_bfe_u32 v21, v1, 1, 2")
    a.e("v_bfe_u32 v22, v1, 4, 1")
    a.e("v_lshl_or_b32 v21, v22, 2, v21")
    a.e("v_add_u32 v22, s11, v1")
    a.e("v_lshlrev_b32 v22, 7, v22")
    for c in range(8):
        a.e(f"v_xor_b32 v23, {c}, v21")
        a.e(f"v_lshl_add_u32 v{24+c}, v23, 4, v22")
        a.e(f"v_add_u32 v{32+c}, {2*SB:#x}, v{24+c}")
    for r in range(104, 116):
        a.e(f"v_mov_b32 v{r}, 0")
    a.e("v_mov_b32 v156, 0x3f803f80")
    a.e("v_mov_b32 v157, 0x00003f80")
    a.e("v_mov_b32 v158, 0x3f800000")
    a.e("s_lshl_b32 s81, s2, 2")
    a.e("s_add_u32 s81, s81, s5")
    a.e("s_cmp_lt_u32 s7, 10")
    a.e(f"s_cbranch_scc1 {L('hssm')}")

    def helper(glu):
        tagp = 'g' if glu else 's'
        vm = Cnt(a, "vmcnt", 63)
        NB = 5 if glu else 4
        a.e("s_and_b32 s8, s5, 1")
        a.e("s_cmp_lt_u32 s5, 2")
        if glu:
            a.e(f"s_cselect_b32 s{S_WB}, s{P_WG}, s{P_WU}")
            a.e(f"s_cselect_b32 s{S_WB+1}, s{P_WG+1}, s{P_WU+1}")
            a.e(f"s_mov_b32 s{S_WB+2}, {640*3456:#x}")
            a.e(f"s_mov_b32 s{S_WB+3}, 0x00020000")
            a.e(f"s_mov_b32 s14, {G_OFF}")
            a.e(f"s_cselect_b32 s14, s14, {U_OFF}")
            a.e("s_mul_i32 s11, s8, 5120")
            a.e("s_add_u32 s15, s14, s11")
            a.e("s_lshl_b32 s9, s9, 1")
            a.e("s_mov_b32 s82, 0xcccccccd")
            a.e("s_mul_i32 s11, s8, 320")
            for jj in range(5):
                a.e(f"v_add_u32 v2, {64*jj}, v1")
                a.e("v_add_u32 v2, s11, v2")
                a.e("v_mul_hi_u32 v3, v2, s82")
                a.e("v_lshrrev_b32 v3, 3, v3")
                a.e("v_mul_u32_u24 v4, 10, v3")
                a.e("v_sub_u32 v4, v2, v4")
                a.e("v_mul_u32_u24 v3, 3456, v3")
                a.e(f"v_lshl_add_u32 v{16+jj}, v4, 4, v3")
                if jj & 3: a.e(f"v_subrev_u32 v{16+jj}, {(jj&3)*1024}, v{16+jj}")
            bstep = 64 * 3456
            a.e("v_and_b32 v2, 7, v1")
            a.e("v_min_u32 v2, 4, v2")
            a.e("v_lshrrev_b32 v3, 3, v1")
            a.e("v_mul_u32_u24 v3, 160, v3")
            a.e("v_lshl_add_u32 v3, v2, 4, v3")
            a.e("s_mul_i32 s11, s8, 80")
            a.e("s_add_u32 s11, s11, s14")
            a.e("v_add_u32 v116, s11, v3")
            a.e(f"v_add_u32 v117, {2*SB:#x}, v116")
        else:
            a.e(f"s_cselect_b32 s{S_WB}, s{P_BRE}, s{P_BIM}")
            a.e(f"s_cselect_b32 s{S_WB+1}, s{P_BRE+1}, s{P_BIM+1}")
            a.e(f"s_mov_b32 s{S_WB+2}, {640*1280:#x}")
            a.e(f"s_mov_b32 s{S_WB+3}, 0x00020000")
            a.e("s_lshl_b32 s15, s5, 12")
            a.e(f"s_add_u32 s15, s15, {BRE_OFF}")
            a.e(f"s_mul_i32 s9, s7, {64*1280}")
            a.e("v_lshrrev_b32 v2, 3, v1")
            a.e("s_lshl_b32 s11, s8, 5")
            a.e("v_add_u32 v3, s11, v2")
            a.e("v_mul_u32_u24 v3, 1280, v3")
            a.e("v_lshl_add_u32 v6, v4, 4, v3")
            a.e("v_lshl_add_u32 v7, v5, 4, v3")
            for jj in range(4):
                a.e(f"v_add_u32 v{16+jj}, {jj*10240 - jj*1024}, v{6 if not (jj>>1)&1 else 7}")
            bstep = 128
            a.e("v_and_b32 v2, 31, v1")
            a.e("s_lshl_b32 s11, s5, 5")
            a.e("v_add_u32 v2, s11, v2")
            a.e("v_lshlrev_b32 v2, 7, v2")
            a.e(f"v_add_u32 v2, {BRE_OFF}, v2")
            a.e("v_lshrrev_b32 v3, 5, v1")
            a.e("v_lshlrev_b32 v3, 2, v3")
            a.e("v_xor_b32 v3, v3, v21")
            for cc in range(4):
                a.e(f"v_xor_b32 v23, {cc}, v3")
                a.e(f"v_lshl_add_u32 v{116+cc}, v23, 4, v2")
                a.e(f"v_add_u32 v{120+cc}, {2*SB:#x}, v{116+cc}")

        def dma(s):
            b = s % 3
            out = []
            pre = [f"s_add_u32 s83, s12, {128*s}", f"s_add_u32 m0, s13, {b*SB}", "s_nop 0"]
            for j in range(8):
                if j == 4: pre = [f"s_add_u32 m0, s13, {b*SB+4096}", "s_nop 0"]
                out.append(pre + [f"buffer_load_dwordx4 v{8+j}, {sr(S_X,4)}, s83 offen offset:{(j&3)*1024} lds"]); pre = []
            pre = [f"s_add_u32 s83, s9, {bstep*s}", f"s_add_u32 m0, s15, {b*SB}", "s_nop 0"]
            for jj in range(NB):
                if jj == 4: pre = [f"s_add_u32 m0, s15, {b*SB+4096}", "s_nop 0"]
                out.append(pre + [f"buffer_load_dwordx4 v{16+jj}, {sr(S_WB,4)}, s83 offen offset:{(jj&3)*1024} lds"]); pre = []
            return out
        def emit_dma(grp, s):
            for x in grp: a.e(x)
            vm.issue(('st', s))

        for g in dma(0): emit_dma(g, 0)
        WD1, WD2, CRr, CIr, CP = 128, 136, 144, 148, 152
        def wd_addr(task_sreg, dstv):
            a.e(f"s_mul_hi_u32 s84, {task_sreg}, 0xcccccccd")
            a.e("s_lshr_b32 s84, s84, 2")                & 0 if False else None
        def wd_task(tsreg, regs, store):
            a.e(f"s_mul_hi_u32 s62, {tsreg}, 0xcccccccd") if False else None
        a.e("s_mov_b32 s82, 0xcccccccd")
        def wd_decode(ts):
            a.e(f"s_mul_hi_u32 s4, {ts}, s82")
            a.e("s_lshr_b32 s4, s4, 2")
            a.e("s_mul_i32 s3, s4, 5")
            a.e(f"s_sub_u32 s3, {ts}, s3")
        def wd_loads(ts, R0):
            wd_decode(ts)
            a.e("s_lshr_b32 s11, s4, 1")
            a.e("s_lshl_b32 s11, s11, 4")
            a.e("s_and_b32 s8, s4, 1")
            a.e("s_lshl_b32 s8, s8, 2")
            a.e("s_add_u32 s11, s11, s8")
            a.e("s_mul_i32 s11, s11, 1280")
            a.e("s_lshl_b32 s8, s3, 8")
            a.e("s_add_u32 s11, s11, s8")
            a.e(f"s_add_u32 s8, s11, {8*1280}")
            for j in range(8):
                a.e(f"buffer_load_dword v{R0+j}, v124, {sr(S_1,4)}, s{11 if j < 4 else 8} offen offset:{(j&3)*1280}")
        a.e("v_lshlrev_b32 v124, 2, v1")
        wd_loads("s81", WD1)
        a.e("s_cmp_ge_u32 s81, 56")
        a.e(f"s_cbranch_scc1 {L(tagp+'_nowd2')}")
        a.e("s_add_u32 s10, s81, 1024")
        wd_loads("s10", WD2)
        a.lab(L(tagp + '_nowd2'))
        a.e("s_cmp_lt_u32 s81, 224")
        a.e(f"s_cbranch_scc1 {L(tagp+'_noc')}")
        def c_decode():
            a.e("s_sub_u32 s10, s81, 224")
            a.e("s_mul_hi_u32 s4, s10, s82")
            a.e("s_lshr_b32 s4, s4, 5")
            a.e("s_mul_i32 s3, s4, 40")
            a.e("s_sub_u32 s3, s10, s3")
        c_decode()
        a.e("v_and_b32 v2, 15, v1")
        a.e("v_mul_u32_u24 v2, 1280, v2")
        a.e("v_lshrrev_b32 v3, 4, v1")
        a.e("v_lshl_add_u32 v2, v3, 4, v2")
        a.e(f"s_mul_i32 s11, s3, {16*1280}")
        a.e("s_lshl_b32 s8, s4, 6")
        a.e("s_add_u32 s11, s11, s8")
        a.e(f"buffer_load_dwordx4 {vr(CRr,4)}, v2, {sr(S_2,4)}, s11 offen")
        a.e(f"buffer_load_dwordx4 {vr(CIr,4)}, v2, {sr(S_3,4)}, s11 offen")
        a.e("v_and_b32 v2, 31, v1")
        a.e("v_lshlrev_b32 v2, 1, v2")
        srd(a, S_4, P_LRE, P_LRE + 1, 0, 1280)
        a.e(f"buffer_load_ushort v{CP}, v2, {sr(S_4,4)}, s8 offen")
        srd(a, S_5, P_LIM, P_LIM + 1, 0, 1280)
        a.e(f"buffer_load_ushort v{CP+1}, v2, {sr(S_5,4)}, s8 offen")
        srd(a, S_4, P_LDT, P_LDT + 1, 0, 1280)
        a.e(f"buffer_load_ushort v{CP+2}, v2, {sr(S_4,4)}, s8 offen")
        a.lab(L(tagp + '_noc'))
        for s in (1, 2):
            for g in dma(s): emit_dma(g, s)

        def stats(s, dm):
            b = s % 3
            boff = b * SB if b < 2 else 0
            ra = 24 if b < 2 else 32
            for c in range(8):
                a.e(f"ds_read_b128 {vr(40+4*c,4)}, v{ra+c} offset:{boff}")
            if glu:
                ca = 116 if b < 2 else 117
                for i in range(8):
                    a.e(f"ds_read_b128 {vr(72+4*i,4)}, v{ca} offset:{boff + i*1280}")
                ncs = 8
            else:
                ca = 116 if b < 2 else 120
                for cc in range(4):
                    a.e(f"ds_read_b128 {vr(72+4*cc,4)}, v{ca+cc} offset:{boff}")
                ncs = 4
            work = []
            work.append(f"s_waitcnt lgkmcnt({ncs})")
            for r in range(32):
                work.append(f"v_dot2_f32_bf16 v{112+(r&1)}, v{40+r}, v156, v{112+(r&1)}")
                work.append(f"v_dot2_f32_bf16 v{114+(r&1)}, v{40+r}, v{40+r}, v{114+(r&1)}")
            work.append("s_waitcnt lgkmcnt(0)")
            if glu:
                for r in range(32):
                    work.append(f"v_dot2_f32_bf16 v{104+2*(r&3)}, v{72+r}, v157, v{104+2*(r&3)}")
                    work.append(f"v_dot2_f32_bf16 v{105+2*(r&3)}, v{72+r}, v158, v{105+2*(r&3)}")
            else:
                for r in range(16):
                    work.append(f"v_dot2_f32_bf16 v{104+(r&3)}, v{72+r}, v156, v{104+(r&3)}")
            dm = list(dm)
            nd = len(dm)
            per = max(1, len(work) // max(1, nd)) if nd else 0
            wi = 0
            for gi, (g, st) in enumerate(dm):
                emit_dma(g, st)
                if gi >= 1:
                    for x in work[wi:wi + per]: a.e(x)
                    wi += per
            for x in work[wi:]: a.e(x)

        a.e(f"s_waitcnt vmcnt({2*(8+NB)})")
        vm.q = vm.q[-2 * (8 + NB):]
        a.e("s_barrier")
        stamp_at(1)
        stats(0, [])
        vm.wait(('st', 1))
        a.e("s_barrier")
        for s in range(0, 8):
            dm = [(g, s + 3) for g in dma(s + 3)] if s + 3 < NST else []
            stats(s + 1, dm)
            if s == 7:
                vm.wait_all()
                a.e("s_mov_b32 s60, 0x05040100") if False else None
                a.e("s_mov_b32 s14, 0x05040100")
                a.e("s_mov_b32 s83, 0x07060302")
                a.e("v_lshrrev_b32 v2, 3, v1")
                a.e(f"v_mul_u32_u24 v125, {TILE_STRIDE}, v2")
                a.e("v_and_b32 v2, 7, v1")
                a.e("v_lshl_add_u32 v125, v2, 5, v125")
                def wd_store(ts, R0):
                    wd_decode(ts)
                    a.e(f"s_mul_i32 s11, s3, {8*TILE_STRIDE}")
                    a.e("s_lshl_b32 s8, s4, 8")
                    a.e("s_add_u32 s11, s11, s8")
                    a.e(f"s_add_u32 s11, s11, {40*1024}")
                    for k in range(4):
                        a.e(f"v_perm_b32 v{40+k}, v{R0+2*k+1}, v{R0+2*k}, s14")
                        a.e(f"v_perm_b32 v{44+k}, v{R0+2*k+1}, v{R0+2*k}, s83")
                    a.e(f"buffer_store_dwordx4 v[40:43], v125, {sr(S_W2,4)}, s11 offen")
                    a.e(f"buffer_store_dwordx4 v[44:47], v125, {sr(S_W2,4)}, s11 offen offset:16")
                wd_store("s81", WD1)
                a.e("s_cmp_ge_u32 s81, 56")
                a.e(f"s_cbranch_scc1 {L(tagp+'_nowd2s')}")
                a.e("s_add_u32 s10, s81, 1024")
                a.e("s_nop 1")
                wd_store("s10", WD2)
                a.lab(L(tagp + '_nowd2s'))
                a.e("s_cmp_lt_u32 s81, 224")
                a.e(f"s_cbranch_scc1 {L(tagp+'_nocs')}")
                c_decode()
                gen_abar(a, CP, CP + 1, CP + 2, 48, 50)
                a.e("v_add_f32 v48, -1.0, v48")
                a.e(f"v_mul_f32 v50, v{CP}, v{CP}")
                a.e(f"v_fmac_f32 v50, v{CP+1}, v{CP+1}")
                a.e("v_rcp_f32 v50, v50")
                a.e(f"v_mul_f32 v51, v48, v{CP}")
                a.e(f"v_fmac_f32 v51, v49, v{CP+1}")
                a.e(f"v_mul_f32 v52, v49, v{CP}")
                a.e(f"v_fma_f32 v52, -v48, v{CP+1}, v52")
                a.e("v_add_f32 v50, v50, v50")
                a.e("v_mul_f32 v51, v51, v50")
                a.e("v_mul_f32 v52, v52, v50")
                a.e("v_lshrrev_b32 v2, 4, v1")
                a.e("v_lshlrev_b32 v2, 5, v2")
                for j in range(8):
                    a.e(f"v_add_u32 v3, {4*j}, v2")
                    a.e(f"ds_bpermute_b32 v{56+j}, v3, v51")
                    a.e(f"ds_bpermute_b32 v{64+j}, v3, v52")
                for k in range(4):
                    a.e(f"v_lshlrev_b32 v{72+2*k}, 16, v{CRr+k}")
                    a.e(f"v_and_b32 v{73+2*k}, 0xffff0000, v{CRr+k}")
                    a.e(f"v_lshlrev_b32 v{80+2*k}, 16, v{CIr+k}")
                    a.e(f"v_and_b32 v{81+2*k}, 0xffff0000, v{CIr+k}")
                a.e("s_waitcnt lgkmcnt(0)")
                for j in range(8):
                    a.e(f"v_mul_f32 v{88+j}, v{72+j}, v{56+j}")
                    a.e(f"v_fma_f32 v{88+j}, -v{80+j}, v{64+j}, v{88+j}")
                    a.e(f"v_mul_f32 v{96+j}, v{72+j}, v{64+j}")
                    a.e(f"v_fmac_f32 v{96+j}, v{80+j}, v{56+j}")
                for k in range(4):
                    a.e(f"v_cvt_pk_bf16_f32 v{48+k}, v{88+2*k}, v{89+2*k}")
                    a.e(f"v_cvt_pk_bf16_f32 v{52+k}, -v{96+2*k}, -v{97+2*k}")
                a.e(f"s_mul_i32 s11, s3, {TILE_STRIDE}")
                a.e("s_lshl_b32 s8, s4, 10")
                a.e("s_add_u32 s11, s11, s8")
                a.e(f"s_add_u32 s8, s11, {20*1024}")
                a.e("v_lshlrev_b32 v2, 4, v1")
                a.e(f"buffer_store_dwordx4 v[48:51], v2, {sr(S_W2,4)}, s11 offen")
                a.e(f"buffer_store_dwordx4 v[52:55], v2, {sr(S_W2,4)}, s8 offen")
                a.lab(L(tagp + '_nocs'))
            else:
                vm.wait(('st', s + 2))
            a.e("s_barrier")
        stamp_at(2)
        stats(9, [])
        a.e("s_nop 2")
        a.e("v_add_f32 v2, v112, v113")
        a.e("v_add_f32 v3, v114, v115")
        a.e(f"v_mul_f32 v2, {0x3acccccd:#x}, v2")
        a.e(f"v_mul_f32 v3, {0x3acccccd:#x}, v3")
        a.e("v_fma_f32 v3, -v2, v2, v3")
        a.e("v_max_f32 v3, 0, v3")
        bf16r(a, 2, 2)
        bf16r(a, 3, 3)
        a.e(f"v_add_f32 v3, {0x3727c5ac:#x}, v3")
        bf16r(a, 3, 3)
        a.e("v_sqrt_f32 v3, v3")
        a.e("s_nop 0")
        bf16r(a, 3, 3)
        a.e("v_rcp_f32 v3, v3")
        a.e("s_lshl_b32 s11, s5, 6")
        a.e("v_add_u32 v4, s11, v1")
        if glu:
            a.e("v_lshlrev_b32 v5, 3, v4")
            a.e(f"v_add_u32 v6, {T_STAT:#x}, v5")
            a.e("ds_write_b64 v6, v[2:3]")
            a.e("s_cmp_lg_u32 s7, 10")
            a.e(f"s_cbranch_scc1 {L('g_nost')}")
            srd(a, S_4, P_WS, P_WS + 1, ST_OFF, ST_BYTES)
            a.e("s_lshl_b32 s11, s6, 11")
            a.e(f"buffer_store_dwordx2 v[2:3], v5, {sr(S_4,4)}, s11 offen")
            a.lab(L('g_nost'))
            a.e("s_lshl_b32 s11, s5, 11")
            a.e(f"s_add_u32 s11, s11, {SB}")
            a.e("v_lshl_add_u32 v6, v1, 5, s11")
            a.e("ds_write_b128 v6, v[104:107]")
            a.e("ds_write_b128 v6, v[108:111] offset:16")
            a.e("v_lshl_add_u32 v6, v1, 2, s11")
            a.e("s_waitcnt lgkmcnt(0)")
            for kg in range(8):
                a.e(f"ds_read_b32 v{40+kg}, v6 offset:{kg*256}")
            a.e("s_waitcnt lgkmcnt(0)")
            for k in (0, 2, 4, 6):
                a.e(f"v_add_f32 v{40+k}, v{40+k}, v{41+k}")
            a.e("v_add_f32 v40, v40, v42")
            a.e("v_add_f32 v44, v44, v46")
            a.e("v_add_f32 v40, v40, v44")
            a.e("s_mul_i32 s11, s5, 160")
            a.e(f"s_add_u32 s11, s11, {T_CS:#x}")
            a.e("v_lshl_add_u32 v6, v1, 2, s11")
            a.e("v_cmp_gt_u32 vcc, 40, v1")
            a.e("s_and_saveexec_b64 s[62:63], vcc")
            a.e("ds_write_b32 v6, v40")
            a.e("s_mov_b64 exec, s[62:63]")
        else:
            a.e("v_and_b32 v5, 32, v1")
            a.e("v_bfe_u32 v6, v1, 3, 1")
            a.e("v_lshl_or_b32 v5, v6, 4, v5")
            a.e("v_and_b32 v6, 7, v1")
            a.e("v_lshl_or_b32 v5, v6, 1, v5")
            a.e("v_bfe_u32 v6, v1, 4, 1")
            a.e("v_or_b32 v5, v5, v6")
            a.e("v_add_u32 v5, s11, v5")
            a.e("v_lshlrev_b32 v5, 2, v5")
            a.e(f"v_add_u32 v5, {T_STAT:#x}, v5")
            a.e("ds_write_b32 v5, v2")
            a.e("ds_write_b32 v5, v3 offset:1024")
            a.e("v_add_f32 v104, v104, v105")
            a.e("v_add_f32 v106, v106, v107")
            a.e("v_add_f32 v104, v104, v106")
            a.e("v_xor_b32 v6, 32, v1")
            a.e("v_lshlrev_b32 v6, 2, v6")
            a.e("ds_bpermute_b32 v105, v6, v104")
            a.e("v_and_b32 v6, 31, v1")
            a.e("s_lshl_b32 s11, s5, 7")
            a.e(f"s_add_u32 s11, s11, {T_CS:#x}")
            a.e("v_lshl_add_u32 v6, v6, 2, s11")
            a.e("s_waitcnt lgkmcnt(0)")
            a.e("v_add_f32 v104, v104, v105")
            a.e("ds_write_b32 v6, v104")
        a.e("s_waitcnt lgkmcnt(0)")
        stamp_at(3)
        a.e("s_barrier")
        if stamp:
            a.e("s_add_u32 s5, s5, 4")
            stamp_out()
        a.e("s_endpgm")
    a.c("================ helper GLU")
    helper(True)
    a.lab(L('hssm'))
    a.c("================ helper SSM")
    helper(False)
    a.lab(done)
    a.e("s_endpgm")
    return kernel_desc(name, 256, 102, 256)
```

```python
from asmlib import *
A2_OFF = 0
TILE_STRIDE = 94 * 1024
A2_BYTES = 128 * TILE_STRIDE
W2_OFF = 16 << 20
W2_BYTES = 40 * TILE_STRIDE
ST_OFF = 24 << 20
ST_BYTES = 2048 * 8
LB_OFF = 25 << 20
STAMP_OFF = 32 << 20
K2_LDS = 4 * 64 * 336

def gen_k2(a, name, D=5, xmap=0, stamp=False):
    NK = 94
    a.raw(f".globl {name}\n.p2align 8\n.type {name},@function")
    a.lab(name)
    done = f"{name}_done"
    a.e("s_cmp_ge_u32 s2, 256")
    a.e(f"s_cbranch_scc1 {done}")
    a.e("s_load_dwordx2 s[4:5], s[0:1], 0")
    a.e("s_load_dwordx2 s[6:7], s[0:1], 64")
    a.e("s_load_dwordx2 s[8:9], s[0:1], 104")
    a.e("s_load_dwordx2 s[10:11], s[0:1], 120")
    if stamp:
        a.e("s_memrealtime s[62:63]")
    a.e("s_and_b32 s3, s2, 7")
    a.e("s_lshr_b32 s12, s2, 3")
    if xmap == 0:
        a.e("s_lshr_b32 s13, s12, 3")
        a.e("s_lshl_b32 s14, s3, 2")
        a.e("s_add_u32 s13, s13, s14")
        a.e("s_and_b32 s14, s12, 7")
    elif xmap == 1:
        a.e("s_lshr_b32 s13, s12, 2")
        a.e("s_lshr_b32 s14, s3, 1")
        a.e("s_lshl_b32 s14, s14, 3")
        a.e("s_add_u32 s13, s13, s14")
        a.e("s_and_b32 s14, s3, 1")
        a.e("s_lshl_b32 s14, s14, 2")
        a.e("s_and_b32 s15, s12, 3")
        a.e("s_add_u32 s14, s14, s15")
    elif xmap == 3:
        a.e("s_and_b32 s13, s12, 1")
        a.e("s_lshr_b32 s14, s12, 1")
        a.e("s_and_b32 s14, s14, 1")
    elif xmap == 4:
        a.e("s_mov_b32 s13, 0")
        a.e("s_mov_b32 s14, 0")
    else:
        a.e("s_mov_b32 s13, s12")
        a.e("s_mov_b32 s14, s3")
    a.e("v_lshrrev_b32 v1, 6, v0")
    a.e("v_and_b32 v2, 63, v0")
    a.e("v_readfirstlane_b32 s15, v1")
    a.e("s_waitcnt lgkmcnt(0)")
    S_A2, S_W2, S_X, S_D, S_ST, S_O = 16, 20, 24, 28, 32, 36
    srd(a, S_A2, 10, 11, A2_OFF, A2_BYTES)
    srd(a, S_W2, 10, 11, W2_OFF, W2_BYTES)
    srd(a, S_X, 4, 5, 0, 2048 * 640 * 2)
    srd(a, S_D, 6, 7, 0, 1280)
    srd(a, S_ST, 10, 11, ST_OFF, ST_BYTES)
    srd(a, S_O, 8, 9, 0, 2048 * 640 * 4)
    a.e(f"s_mul_i32 s40, s13, {4*TILE_STRIDE}")
    a.e(f"s_mul_i32 s41, s14, {5*TILE_STRIDE}")
    a.e("s_lshl_b32 s42, s15, 10")
    a.e("s_add_u32 s40, s40, s42")
    a.e("s_add_u32 s41, s41, s42")
    a.e("v_lshlrev_b32 v3, 4, v2")
    for i in range(1, 5):
        a.e(f"v_add_u32 v{3+i}, {i*TILE_STRIDE:#x}, v3")
    VOFF = 3
    VL, VO, VX, VD, VS = 8, 13, 18, 28, 38
    VBASE = 18
    FR = 48
    a.e("s_mov_b32 s43, 0xcccccccd")
    a.e("s_lshl_b32 s44, s13, 6")
    a.e("s_mul_i32 s45, s14, 80")
    for cc in range(5):
        a.e(f"v_add_u32 v{FR}, {256*cc}, v0")
        a.e(f"v_mul_hi_u32 v{FR+1}, v{FR}, s43")
        a.e(f"v_lshrrev_b32 v{FR+1}, 4, v{FR+1}")
        a.e(f"v_mul_u32_u24 v{FR+2}, 20, v{FR+1}")
        a.e(f"v_sub_u32 v{FR+2}, v{FR}, v{FR+2}")
        a.e(f"v_mul_u32_u24 v{VL+cc}, 336, v{FR+1}")
        a.e(f"v_lshl_add_u32 v{VL+cc}, v{FR+2}, 4, v{VL+cc}")
        a.e(f"v_add_u32 v{FR+1}, s44, v{FR+1}")
        a.e(f"v_lshl_add_u32 v{FR+2}, v{FR+2}, 2, s45")
        a.e(f"v_mul_u32_u24 v{FR+3}, 640, v{FR+1}")
        a.e(f"v_add_u32 v{FR+3}, v{FR+3}, v{FR+2}")
        a.e(f"v_lshlrev_b32 v{VO+cc}, 2, v{FR+3}")
        a.e(f"v_lshlrev_b32 v{FR+3}, 1, v{FR+3}")
        a.e(f"buffer_load_dwordx2 {vr(VX+2*cc,2)}, v{FR+3}, {sr(S_X,4)}, 0 offen")
        a.e(f"v_lshlrev_b32 v{FR+2}, 1, v{FR+2}")
        a.e(f"buffer_load_dwordx2 {vr(VD+2*cc,2)}, v{FR+2}, {sr(S_D,4)}, 0 offen")
        a.e(f"v_lshlrev_b32 v{FR+1}, 3, v{FR+1}")
        a.e(f"buffer_load_dwordx2 {vr(VS+2*cc,2)}, v{FR+1}, {sr(S_ST,4)}, 0 offen")
    for r in range(80):
        a.e(f"v_accvgpr_write_b32 a{r}, 0")
    l23 = f"{name}_w23"
    lred = f"{name}_red"
    a.e("s_cmp_ge_u32 s15, 2")
    a.e(f"s_cbranch_scc1 {l23}")

    def loads(step, slot):
        out = []
        base = FR + 36 * slot
        out.append(f"s_add_u32 s46, s40, {step*4096}")
        out.append(f"s_add_u32 s47, s41, {step*4096}")
        for j in range(5):
            out.append(f"buffer_load_dwordx4 {vr(base+16+4*j,4)}, v{VOFF+j}, {sr(S_W2,4)}, s47 offen")
            if j < 4:
                out.append(f"buffer_load_dwordx4 {vr(base+4*j,4)}, v{VOFF+j}, {sr(S_A2,4)}, s46 offen")
        return out

    def base_calc():
        T = FR + 36 * (D - 1)
        for cc in range(5):
            x0, x1 = VX + 2*cc, VX + 2*cc + 1
            d0, d1 = VD + 2*cc, VD + 2*cc + 1
            mean, rstd = VS + 2*cc, VS + 2*cc + 1
            X = T; Dd = T + 4; t = T + 8
            a.e(f"v_lshlrev_b32 v{X}, 16, v{x0}")
            a.e(f"v_and_b32 v{X+1}, 0xffff0000, v{x0}")
            a.e(f"v_lshlrev_b32 v{X+2}, 16, v{x1}")
            a.e(f"v_and_b32 v{X+3}, 0xffff0000, v{x1}")
            a.e(f"v_lshlrev_b32 v{Dd}, 16, v{d0}")
            a.e(f"v_and_b32 v{Dd+1}, 0xffff0000, v{d0}")
            a.e(f"v_lshlrev_b32 v{Dd+2}, 16, v{d1}")
            a.e(f"v_and_b32 v{Dd+3}, 0xffff0000, v{d1}")
            for k in range(4):
                a.e(f"v_sub_f32 v{t+k}, v{X+k}, v{mean}")
            def rnd():
                a.e(f"v_cvt_pk_bf16_f32 v{t+4}, v{t}, v{t+1}")
                a.e(f"v_cvt_pk_bf16_f32 v{t+5}, v{t+2}, v{t+3}")
                a.e(f"v_lshlrev_b32 v{t}, 16, v{t+4}")
                a.e(f"v_and_b32 v{t+1}, 0xffff0000, v{t+4}")
                a.e(f"v_lshlrev_b32 v{t+2}, 16, v{t+5}")
                a.e(f"v_and_b32 v{t+3}, 0xffff0000, v{t+5}")
            rnd()
            for k in range(4):
                a.e(f"v_mul_f32 v{t+k}, v{t+k}, v{rstd}")
            rnd()
            for k in range(4):
                a.e(f"v_mul_f32 v{t+k}, v{t+k}, v{Dd+k}")
            rnd()
            for k in range(4):
                a.e(f"v_add_f32 v{T+16+4*cc+k}, v{t+k}, v{X+k}")
        for r in range(20):
            a.e(f"v_mov_b32 v{VBASE+r}, v{T+16+r}")

    def body(nsteps):
        for s in range(D - 1):
            for ins in loads(s, s % D):
                a.e(ins)
        a.e(f"s_waitcnt vmcnt({9*(D-1)})")
        if stamp: a.e("s_memrealtime s[64:65]")
        base_calc()
        issued = D - 1
        for s in range(nsteps):
            nxt = loads(issued, issued % D) if issued < nsteps else []
            pend = issued - (s + 1)
            a.e(f"s_waitcnt vmcnt({9*pend})")
            if stamp and s == 0: a.e("s_memrealtime s[66:67]")
            if stamp and s == 12: a.e("s_memrealtime s[68:69]")
            base = FR + 36 * (s % D)
            li = 0
            mi = 0
            for j in range(5):
                for i in range(4):
                    acc = ar(4 * (i * 5 + j), 4)
                    a.e(f"v_mfma_f32_16x16x32_bf16 {acc}, {vr(base+16+4*j,4)}, {vr(base+4*i,4)}, {acc}")
                    mi += 1
                    if li < len(nxt) and (mi % 2 == 1 or li < 2):
                        a.e(nxt[li]); li += 1
                        if li == 1:
                            a.e(nxt[li]); li += 1
            while li < len(nxt):
                a.e(nxt[li]); li += 1
            if nxt:
                issued += 1
    body(24)
    a.e(f"s_branch {lred}")
    a.lab(l23)
    body(23)
    a.lab(lred)
    if stamp: a.e("s_memrealtime s[70:71]")
    a.e("v_and_b32 v1, 15, v2")
    a.e("v_mul_u32_u24 v1, 336, v1")
    a.e("v_lshrrev_b32 v3, 4, v2")
    a.e("v_lshl_add_u32 v1, v3, 4, v1")
    a.e(f"s_mul_i32 s46, s15, {64*336}")
    a.e("v_add_u32 v1, s46, v1")
    a.e("s_nop 7")
    for i in range(4):
        for j in range(5):
            a.e(f"ds_write_b128 v1, {ar(4*(i*5+j),4)} offset:{16*i*336 + 64*j}")
    a.e("s_waitcnt lgkmcnt(0)")
    a.e("s_barrier")
    for cc in range(5):
        for w in range(4):
            a.e(f"ds_read_b128 {vr(FR+16*cc+4*w,4)}, v{VL+cc} offset:{w*64*336}")
    for cc in range(5):
        a.e(f"s_waitcnt lgkmcnt({min(15,4*(4-cc))})")
        b = FR + 16 * cc
        a.e(f"v_pk_add_f32 {vr(b,2)}, {vr(b,2)}, {vr(b+4,2)}")
        a.e(f"v_pk_add_f32 {vr(b+2,2)}, {vr(b+2,2)}, {vr(b+6,2)}")
        a.e(f"v_pk_add_f32 {vr(b+8,2)}, {vr(b+8,2)}, {vr(b+12,2)}")
        a.e(f"v_pk_add_f32 {vr(b+10,2)}, {vr(b+10,2)}, {vr(b+14,2)}")
        a.e(f"v_pk_add_f32 {vr(b,2)}, {vr(b,2)}, {vr(b+8,2)}")
        a.e(f"v_pk_add_f32 {vr(b+2,2)}, {vr(b+2,2)}, {vr(b+10,2)}")
        a.e(f"v_pk_add_f32 {vr(b,2)}, {vr(b,2)}, {vr(VBASE+4*cc,2)}")
        a.e(f"v_pk_add_f32 {vr(b+2,2)}, {vr(b+2,2)}, {vr(VBASE+4*cc+2,2)}")
        a.e(f"buffer_store_dwordx4 {vr(b,4)}, v{VO+cc}, {sr(S_O,4)}, 0 offen")
    if stamp:
        a.e("s_memrealtime s[72:73]")
        a.e("s_waitcnt vmcnt(0)")
        a.e("s_memrealtime s[74:75]")
        a.e("s_waitcnt lgkmcnt(0)")
        srd(a, 76, 10, 11, STAMP_OFF, 1<<20)
        for k in range(7):
            a.e(f"v_mov_b32 v{8+k}, s{62+2*k}")
        a.e("v_mov_b32 v15, s15")
        a.e("s_lshl_b32 s60, s2, 7")
        a.e("s_lshl_b32 s61, s15, 5")
        a.e("s_add_u32 s60, s60, s61")
        a.e("v_mov_b32 v3, s60")
        a.e("buffer_store_dwordx4 v[8:11], v3, s[76:79], 0 offen")
        a.e("buffer_store_dwordx4 v[12:15], v3, s[76:79], 0 offen offset:16")
    a.lab(done)
    a.e("s_endpgm")
    nv = FR + 36 * D
    assert nv <= 256
    return kernel_desc(name, 256 + 80, 96, 256)

if __name__ == "__main__":
    import sys
    D = int(sys.argv[2]) if len(sys.argv) > 2 else 5
    xmap = int(sys.argv[3]) if len(sys.argv) > 3 else 0
    a = Asm()
    a.raw(f"; @launch kernel=k2_kernel grid=(256,1,1) block=(256,1,1) lds={K2_LDS}")
    a.raw('.amdgcn_target "amdgcn-amd-amdhsa--gfx950"\n.text')
    desc = gen_k2(a, "k2_kernel", D, xmap, stamp=(len(sys.argv) > 4))
    a.raw('.section .rodata,"a"\n.p2align 6')
    a.raw(desc)
    open(sys.argv[1], "w").write(a.text())
```

```python
import sys
from asmlib import *
import k1, k2
def build(fn, stamp=False, D=4, xmap=1, prio=0, only=None):
    a = Asm()
    hdr = open("parallel_sum__ssm_conv_s5__glu_gated_bilinear__prompt.s.ref").read().split("\n")
    for l in hdr:
        if l.startswith(";") and "@launch" not in l and "Override" not in l and "grid=ceil" not in l: a.raw(l)
    a.raw(f"; @launch kernel=ssm_glu_k1_kernel grid=(256,1,1) block=(512,1,1) lds={k1.K1_LDS}")
    a.raw(f"; @launch kernel=ssm_glu_k2_kernel grid=(256,1,1) block=(256,1,1) lds={k2.K2_LDS}")
    a.raw('.amdgcn_target "amdgcn-amd-amdhsa--gfx950"\n.text')
    d1 = k1.gen_k1(a, "ssm_glu_k1_kernel", stamp=stamp, prio=prio)
    d2 = k2.gen_k2(a, "ssm_glu_k2_kernel", D, xmap, stamp=stamp)
    a.raw('.section .rodata,"a"\n.p2align 6')
    a.raw(d1)
    a.raw(".p2align 6")
    a.raw(d2)
    open(fn, "w").write(a.text())
if __name__ == "__main__":
    build(sys.argv[1], stamp=(len(sys.argv) > 2 and sys.argv[2] == "1"))
```

```python
from asmlib import *
import sys
TS = 94 * 1024
A2_OFF = 0;            A2_BYTES = 128 * TS
W2_OFF = 16 << 20;     W2_BYTES = 40 * TS
SY_OFF = 24 << 20
SG_O = 0
CP_O = 0x10000
LB_O = 0xC0000
FA_O = 0xE0000
FW_O = 0xE8000
SY_BYTES = 0xF0000
STAMP_OFF = 32 << 20
SB = 53376
G_OFF = 32768; U_OFF = 43136; BRE_OFF = 32768
TAB = 3 * SB
T_STAT = TAB; T_CS = TAB + 2048; T_NONCE = TAB + 2048 + 640
LDS_BYTES = TAB + 2048 + 640 + 64
NST = 10
T_AB = 92160
INV2PI = 0x3e22f983; LOG2E = 0x3fb8aa3b
KS = list(range(40, 94)) + list(range(0, 40))
SPS = 4; NSTG = 24; RING = 7; SLOT0 = 5
SPIN = 0x20000

class Cnt:
    def __init__(self, a, name, maxv):
        self.a, self.name, self.maxv, self.q = a, name, maxv, []
    def issue(self, tag, n=1):
        self.q += [tag] * n
    def wait(self, tag):
        idx = [i for i, t in enumerate(self.q) if t == tag or (isinstance(t, frozenset) and tag in t)]
        if not idx: return
        n = min(len(self.q) - 1 - idx[-1], self.maxv)
        self.a.e(f"s_waitcnt {self.name}({n})")
        self.q = self.q[len(self.q) - n:] if n else []
    def wait_all(self):
        self.a.e(f"s_waitcnt {self.name}(0)"); self.q = []

def bf16r(a, dst, src):
    a.e(f"v_cvt_pk_bf16_f32 v{dst}, v{src}, v{src}")
    a.e(f"v_lshlrev_b32 v{dst}, 16, v{dst}")

def gen_abar(a, vLre, vLim, vldt, oa, t):
    a.e(f"v_lshlrev_b32 v{vLre}, 16, v{vLre}")
    a.e(f"v_lshlrev_b32 v{vLim}, 16, v{vLim}")
    a.e(f"v_lshlrev_b32 v{vldt}, 16, v{vldt}")
    a.e(f"v_mul_f32 v{t}, {LOG2E:#x}, v{vldt}")
    a.e(f"v_exp_f32 v{t}, v{t}")
    a.e("s_nop 0")
    bf16r(a, t, t)
    a.e(f"v_mul_f32 v{t+1}, v{t}, v{vLre}")
    a.e(f"v_mul_f32 v{t+2}, v{t}, v{vLim}")
    a.e(f"v_mul_f32 v{t+1}, {LOG2E:#x}, v{t+1}")
    a.e(f"v_exp_f32 v{t+1}, v{t+1}")
    a.e(f"v_mul_f32 v{t+2}, {INV2PI:#x}, v{t+2}")
    a.e(f"v_fract_f32 v{t+2}, v{t+2}")
    a.e(f"v_cos_f32 v{t+3}, v{t+2}")
    a.e(f"v_sin_f32 v{t+2}, v{t+2}")
    a.e("s_nop 0")
    a.e(f"v_mul_f32 v{oa}, v{t+1}, v{t+3}")
    a.e(f"v_mul_f32 v{oa+1}, v{t+1}, v{t+2}")

def csq(a, d, s, t):
    a.e(f"v_mul_f32 v{t}, v{s+1}, v{s+1}")
    a.e(f"v_mul_f32 v{t+1}, v{s}, v{s+1}")
    a.e(f"v_fma_f32 v{d}, v{s}, v{s}, -v{t}")
    a.e(f"v_add_f32 v{d+1}, v{t+1}, v{t+1}")

DPP = "row_mask:0xf bank_mask:0xf"
def red16(a, regs):
    for sh in (8, 4, 2, 1):
        a.e("s_nop 1")
        for r in regs: a.e(f"v_add_f32 v{r}, v{r}, v{r} row_ror:{sh} {DPP}")
def swap_add(a, regs, tmp, which):
    for i, r in enumerate(regs): a.e(f"v_mov_b32 v{tmp+i}, v{r}")
    a.e("s_nop 1")
    for i, r in enumerate(regs): a.e(f"v_permlane{which}_swap_b32 v{r}, v{tmp+i}")
    a.e("s_nop 1")
    for i, r in enumerate(regs): a.e(f"v_add_f32 v{r}, v{r}, v{tmp+i}")

def gen(a, name, stamp=0, prio=0, AD=8, outflag="", bst=0, nosc=0, clk=0, npre=0, PD=3, pf=0, nc=0, rot=0, wpf=2, dly=1, apf=0, rot2=0, x2=0):
    a.raw(f".globl {name}\n.p2align 8\n.type {name},@function")
    a.lab(name)
    done = f"{name}_done"
    L = lambda s: f"{name}_{s}"
    P_X, P_LRE, P_LIM, P_BRE, P_BIM, P_CRE, P_CIM, P_LDT = 16, 18, 20, 22, 24, 26, 28, 30
    P_DSK = 32; P_WG, P_WU, P_WD, P_OUT, P_DBG, P_WS = 36, 38, 40, 42, 44, 46
    S_X, S_WB, S_A2, S_W2, S_SY, S_1, S_2, S_3 = 48, 52, 56, 60, 64, 68, 72, 76
    NONCE = 15
    a.e("s_cmp_ge_u32 s2, 256")
    a.e(f"s_cbranch_scc1 {done}")
    a.e("s_load_dwordx16 s[16:31], s[0:1], 0")
    a.e("s_load_dwordx16 s[32:47], s[0:1], 64")
    if stamp: a.e("s_memrealtime s[84:85]")
    a.e("s_and_b32 s3, s2, 7")
    a.e("s_lshr_b32 s4, s2, 3")
    a.e("s_and_b32 s6, s3, 1"); a.e("s_lshl_b32 s6, s6, 2"); a.e("s_and_b32 s8, s4, 3"); a.e("s_add_u32 s6, s6, s8")
    a.e("s_lshr_b32 s7, s3, 1"); a.e("s_lshl_b32 s7, s7, 3"); a.e("s_lshr_b32 s8, s4, 2"); a.e("s_add_u32 s7, s7, s8")
    a.e("v_lshrrev_b32 v2, 6, v0")
    a.e("v_and_b32 v1, 63, v0")
    a.e("v_readfirstlane_b32 s5, v2")
    a.e("s_sub_u32 s9, s7, 10"); a.e("s_mul_i32 s9, s9, 80"); a.e("s_min_u32 s9, s9, 1648")
    a.e("s_lshr_b32 s10, s9, 4")
    a.e("s_and_b32 s14, s5, 3")
    a.e("v_lshrrev_b32 v2, 3, v1")
    a.e("s_lshl_b32 s11, s14, 6")
    a.e("v_add_u32 v3, s11, v2")
    a.e("v_mul_u32_u24 v3, 1280, v3")
    a.e("v_bfe_u32 v4, v1, 4, 2")
    a.e("v_and_b32 v5, 7, v1")
    a.e("v_xor_b32 v4, v4, v5")
    a.e("v_xor_b32 v5, 4, v4")
    a.e("v_lshl_add_u32 v6, v4, 4, v3")
    a.e("v_lshl_add_u32 v7, v5, 4, v3")
    DA, DB = 232, 240
    for j in range(8):
        a.e(f"v_add_u32 v{DA+j}, {j*10240 - (j&3)*1024}, v{6 if not (j>>1)&1 else 7}")
    a.e(f"s_mul_i32 s12, s6, {256*1280}")
    a.e("s_lshl_b32 s13, s14, 13")
    a.e("s_waitcnt lgkmcnt(0)")
    srd(a, S_X, P_X, P_X + 1, 0, 2048 * 1280)
    if rot == 1: a.e("s_lshr_b32 s0, s4, 2")
    elif rot == 3:
        a.e("s_lshr_b32 s0, s4, 2"); a.e("s_and_b32 s1, s4, 3"); a.e("s_mul_i32 s1, s1, 3"); a.e("s_add_u32 s0, s0, s1")
        a.e("s_sub_u32 s1, s0, 10"); a.e("s_cmp_ge_u32 s0, 10"); a.e("s_cselect_b32 s0, s1, s0")
    elif rot == 2: a.e("s_lshr_b32 s0, s4, 2"); a.e("s_and_b32 s0, s0, 1"); a.e("s_mul_i32 s0, s0, 5")
    else: a.e("s_mov_b32 s0, 0")
    a.e("s_cmp_lt_u32 s5, 4")
    a.e(f"s_cbranch_scc1 {L('nodma0')}")
    a.e("s_lshl_b32 s83, s0, 7"); a.e("s_add_u32 s83, s83, s12")
    a.e("s_mov_b32 m0, s13")
    for j in range(8):
        if j == 4:
            a.e("s_add_u32 m0, s13, 4096"); a.e("s_nop 0")
        a.e(f"buffer_load_dwordx4 v{DA+j}, {sr(S_X,4)}, s83 offen offset:{(j&3)*1024} lds")
    a.lab(L('nodma0'))
    srd(a, S_A2, P_WS, P_WS + 1, A2_OFF, A2_BYTES)
    srd(a, S_W2, P_WS, P_WS + 1, W2_OFF, W2_BYTES)
    srd(a, S_SY, P_WS, P_WS + 1, SY_OFF, SY_BYTES)
    a.e("s_cmp_lt_u32 s7, 10")
    a.e(f"s_cbranch_scc1 {L('ssm_b')}")

    ph = [0]
    def stamp_at(k):
        if stamp and not (bst and ph[0] != 1 and k >= 2): a.e(f"s_memrealtime s[{84+2*k}:{85+2*k}]")
    def stamp_out(phase, vt):
        if not stamp: return
        a.e("s_waitcnt lgkmcnt(0)")
        srd(a, S_3, P_WS, P_WS + 1, STAMP_OFF + phase * (1 << 19), 1 << 19)
        for k in range(8): a.e(f"v_mov_b32 v{vt+k}, s{84+2*k}")
        a.e("s_lshl_b32 s80, s2, 8"); a.e("s_lshl_b32 s81, s5, 5"); a.e("s_add_u32 s80, s80, s81")
        a.e(f"v_mov_b32 v{vt+8}, s80")
        a.e(f"buffer_store_dwordx4 {vr(vt,4)}, v{vt+8}, {sr(S_3,4)}, 0 offen")
        a.e(f"buffer_store_dwordx4 {vr(vt+4,4)}, v{vt+8}, {sr(S_3,4)}, 0 offen offset:16")

    def b_setup(glu):
        a.e("s_and_b32 s80, s14, 1")
        a.e("s_cmp_lt_u32 s14, 2")
        if glu:
            a.e(f"s_cselect_b32 s{S_WB}, s{P_WG}, s{P_WU}")
            a.e(f"s_cselect_b32 s{S_WB+1}, s{P_WG+1}, s{P_WU+1}")
            a.e(f"s_mov_b32 s{S_WB+2}, {640*3456:#x}")
            a.e(f"s_mov_b32 s{S_WB+3}, 0x00020000")
            a.e(f"s_mov_b32 s100, {G_OFF}")
            a.e(f"s_cselect_b32 s100, s100, {U_OFF}")
            a.e("s_mul_i32 s11, s80, 5120")
            a.e("s_add_u32 s100, s100, s11")
            a.e("s_lshl_b32 s101, s9, 1")
            a.e("s_mov_b32 s81, 0xcccccccd")
            a.e("s_mul_i32 s11, s80, 320")
            for jj in range(5):
                a.e(f"v_add_u32 v2, {64*jj}, v1")
                a.e("v_add_u32 v2, s11, v2")
                a.e("v_mul_hi_u32 v3, v2, s81")
                a.e("v_lshrrev_b32 v3, 3, v3")
                a.e("v_mul_u32_u24 v6, 10, v3")
                a.e("v_sub_u32 v6, v2, v6")
                a.e("v_mul_u32_u24 v3, 3456, v3")
                a.e(f"v_lshl_add_u32 v{DB+jj}, v6, 4, v3")
                if jj & 3: a.e(f"v_subrev_u32 v{DB+jj}, {(jj&3)*1024}, v{DB+jj}")
        else:
            a.e(f"s_cselect_b32 s{S_WB}, s{P_BRE}, s{P_BIM}")
            a.e(f"s_cselect_b32 s{S_WB+1}, s{P_BRE+1}, s{P_BIM+1}")
            a.e(f"s_mov_b32 s{S_WB+2}, {640*1280:#x}")
            a.e(f"s_mov_b32 s{S_WB+3}, 0x00020000")
            a.e("s_lshl_b32 s100, s14, 12")
            a.e(f"s_add_u32 s100, s100, {BRE_OFF}")
            a.e(f"s_mul_i32 s101, s7, {64*1280}")
            a.e("v_lshrrev_b32 v2, 3, v1")
            a.e("s_lshl_b32 s11, s80, 5")
            a.e("v_add_u32 v3, s11, v2")
            a.e("v_mul_u32_u24 v3, 1280, v3")
            a.e("v_lshl_add_u32 v6, v4, 4, v3")
            a.e("v_lshl_add_u32 v7, v5, 4, v3")
            for jj in range(4):
                a.e(f"v_add_u32 v{DB+jj}, {jj*10240 - jj*1024}, v{6 if not (jj>>1)&1 else 7}")
        a.e("s_cmp_lt_u32 s5, 4")
        a.e(f"s_cbranch_scc1 {L('cglu' if glu else 'cssm')}")
        a.e(f"s_mul_i32 s83, s0, {64*3456 if glu else 128}"); a.e("s_add_u32 s83, s83, s101")
        a.e("s_mov_b32 m0, s100")
        for jj in range(5 if glu else 4):
            if jj == 4:
                a.e("s_add_u32 m0, s100, 4096"); a.e("s_nop 0")
            a.e(f"buffer_load_dwordx4 v{DB+jj}, {sr(S_WB,4)}, s83 offen offset:{(jj&3)*1024} lds")
        a.e(f"s_branch {L('hglu' if glu else 'hssm')}")

    def side_jobs(glu):
        RS, CSD, XU, CA = 96, 112, 160, 192
        a.e("s_lshl_b32 s80, s6, 8"); a.e("s_lshl_b32 s81, s7, 3"); a.e("s_add_u32 s80, s80, s81"); a.e("s_lshl_b32 s81, s14, 1"); a.e("s_add_u32 s80, s80, s81")
        a.e("v_lshrrev_b32 v2, 5, v1"); a.e("v_add_u32 v3, s80, v2")
        a.e("v_mul_u32_u24 v2, 1280, v3"); a.e("v_and_b32 v3, 31, v1"); a.e("v_lshl_add_u32 v2, v3, 3, v2")
        for i in range(5):
            a.e(f"buffer_load_dwordx2 {vr(RS+2*i,2)}, v2, {sr(S_X,4)}, 0 offen offset:{256*i}")
        if glu:
            a.e("s_mul_i32 s80, s6, 80"); a.e("s_and_b32 s81, s14, 1"); a.e("s_mul_i32 s81, s81, 40"); a.e("s_add_u32 s80, s80, s81")
            a.e("v_lshrrev_b32 v2, 4, v1"); a.e("v_add_u32 v2, s80, v2"); a.e("v_mul_u32_u24 v2, 3456, v2")
            a.e("v_and_b32 v3, 15, v1"); a.e("v_min_u32 v3, 9, v3"); a.e("v_lshl_add_u32 v2, v3, 4, v2")
            for i in range(10):
                a.e(f"s_add_u32 s83, s101, {4*i*3456}")
                a.e(f"buffer_load_dwordx4 {vr(CSD+4*i,4)}, v2, {sr(S_WB,4)}, s83 offen")
            ncs = 10
        else:
            a.e("s_and_b32 s81, s14, 1"); a.e("s_lshl_b32 s81, s81, 5")
            a.e("v_and_b32 v2, 31, v1"); a.e("v_add_u32 v2, s81, v2"); a.e("v_mul_u32_u24 v2, 1280, v2")
            a.e("v_lshrrev_b32 v3, 5, v1"); a.e("v_mul_u32_u24 v3, 80, v3"); a.e("v_add_u32 v2, v2, v3")
            a.e("s_mul_i32 s80, s6, 160"); a.e("v_add_u32 v2, s80, v2")
            for i in range(5):
                a.e(f"buffer_load_dwordx4 {vr(CSD+4*i,4)}, v2, {sr(S_WB,4)}, s101 offen offset:{16*i}")
            ncs = 5
        return RS, CSD, XU, CA, ncs
    def side_compute(glu, RS, CSD, XU, CA, younger):
        a.e(f"s_waitcnt vmcnt({younger[0]})")
        for k in range(10):
            a.e(f"v_lshlrev_b32 v{XU+2*k}, 16, v{RS+k}"); a.e(f"v_and_b32 v{XU+2*k+1}, 0xffff0000, v{RS+k}")
        a.e(f"v_add_f32 v2, v{XU}, v{XU+1}"); a.e(f"v_add_f32 v3, v{XU+2}, v{XU+3}")
        for k in range(4, 20, 2):
            a.e(f"v_add_f32 v2, v2, v{XU+k}"); a.e(f"v_add_f32 v3, v3, v{XU+k+1}")
        a.e("v_add_f32 v2, v2, v3")
        red16(a, [2]); swap_add(a, [2], 4, 16)
        a.e(f"v_mul_f32 v2, {0x3acccccd:#x}, v2")
        for k in range(20): a.e(f"v_sub_f32 v{XU+k}, v{XU+k}, v2")
        a.e(f"v_mul_f32 v3, v{XU}, v{XU}"); a.e(f"v_mul_f32 v4, v{XU+1}, v{XU+1}")
        for k in range(2, 20, 2):
            a.e(f"v_fmac_f32 v3, v{XU+k}, v{XU+k}"); a.e(f"v_fmac_f32 v4, v{XU+k+1}, v{XU+k+1}")
        a.e("v_add_f32 v3, v3, v4")
        red16(a, [3]); swap_add(a, [3], 4, 16)
        a.e(f"v_mul_f32 v3, {0x3acccccd:#x}, v3")
        bf16r(a, 2, 2); bf16r(a, 3, 3)
        a.e(f"v_add_f32 v3, {0x3727c5ac:#x}, v3")
        bf16r(a, 3, 3)
        a.e("v_sqrt_f32 v3, v3"); a.e("s_nop 0")
        bf16r(a, 3, 3)
        a.e("v_rcp_f32 v3, v3")
        a.e("v_lshrrev_b32 v4, 5, v1"); a.e("s_lshl_b32 s80, s14, 4"); a.e(f"s_add_u32 s80, s80, {T_STAT+1536:#x}")
        a.e("v_lshl_add_u32 v4, v4, 3, s80")
        a.e("ds_write_b64 v4, v[2:3]")
        a.e(f"v_mov_b32 v5, 0x00003f80"); a.e("v_mov_b32 v6, 0x3f800000"); a.e("v_mov_b32 v7, 0x3f803f80")
        a.e(f"s_waitcnt vmcnt({younger[1]})")
        if glu:
            for i in range(10):
                for r in range(4):
                    d = CSD + 4 * i + r
                    a.e(f"v_dot2_f32_bf16 v{CA+2*r}, v{d}, v5, {'0' if i == 0 else f'v{CA+2*r}'}")
                    a.e(f"v_dot2_f32_bf16 v{CA+2*r+1}, v{d}, v6, {'0' if i == 0 else f'v{CA+2*r+1}'}")
            a.e("s_nop 2")
            regs = list(range(CA, CA + 8))
            swap_add(a, regs, XU, 16); swap_add(a, regs, XU, 32)
            a.e("v_and_b32 v4, 15, v1"); a.e("v_min_u32 v4, 9, v4"); a.e("s_mul_i32 s80, s14, 320"); a.e(f"s_add_u32 s80, s80, {T_STAT:#x}")
            a.e("v_lshl_add_u32 v4, v4, 5, s80")
            a.e(f"ds_write_b128 v4, {vr(CA,4)}"); a.e(f"ds_write_b128 v4, {vr(CA+4,4)} offset:16")
        else:
            for k in range(20):
                a.e(f"v_dot2_f32_bf16 v{CA+(k&3)}, v{CSD+k}, v7, {'0' if k < 4 else f'v{CA+(k&3)}'}")
            a.e("s_nop 2")
            a.e(f"v_add_f32 v{CA}, v{CA}, v{CA+1}"); a.e(f"v_add_f32 v{CA+2}, v{CA+2}, v{CA+3}"); a.e(f"v_add_f32 v{CA}, v{CA}, v{CA+2}")
            swap_add(a, [CA], XU, 32)
            a.e("v_and_b32 v4, 31, v1"); a.e("s_lshl_b32 s80, s14, 7"); a.e(f"s_add_u32 s80, s80, {T_STAT:#x}")
            a.e("v_lshl_add_u32 v4, v4, 2, s80")
            a.e(f"ds_write_b32 v4, v{CA}")
        a.e("s_waitcnt lgkmcnt(0)")

    def l2_prefetch(glu):
        if not pf: return
        a.e("s_lshr_b32 s80, s4, 2"); a.e("s_lshl_b32 s80, s80, 5"); a.e("s_lshl_b32 s81, s6, 8"); a.e("s_add_u32 s80, s80, s81")
        a.e("v_and_b32 v2, 31, v1"); a.e("v_lshrrev_b32 v3, 5, v1")
        a.e("v_add_u32 v4, s80, v2"); a.e("v_mul_u32_u24 v4, 1280, v4"); a.e("v_lshl_add_u32 v4, v3, 7, v4")
        a.e("s_lshl_b32 s80, s5, 8"); a.e("s_add_u32 s80, s80, 256")
        a.e("s_and_b32 s81, s4, 3"); a.e("s_lshl_b32 s81, s81, 4")
        if glu:
            a.e("v_bfe_u32 v5, v1, 4, 1"); a.e("v_lshlrev_b32 v5, 6, v5"); a.e("v_and_b32 v6, 15, v1"); a.e("v_add3_u32 v5, v5, v6, s81")
            a.e("v_mul_u32_u24 v5, 3456, v5"); a.e("v_lshl_add_u32 v5, v3, 7, v5")
            a.e("s_and_b32 s82, s5, 1"); a.e(f"s_mul_i32 s82, s82, {128*3456}"); a.e("s_add_u32 s82, s82, s101")
            a.e(f"s_add_u32 s82, s82, {128*3456}"); a.e(f"s_add_u32 s83, s82, {256*3456}")
            a.e(f"buffer_load_dword v26, v5, {sr(S_WB,4)}, s82 offen")
            a.e(f"buffer_load_dword v27, v4, {sr(S_X,4)}, s80 offen")
            a.e(f"buffer_load_dword v28, v5, {sr(S_WB,4)}, s83 offen")
        else:
            a.e("v_and_b32 v5, 15, v1"); a.e("v_add_u32 v5, s81, v5"); a.e("v_mul_u32_u24 v5, 1280, v5")
            a.e("v_lshrrev_b32 v6, 4, v1"); a.e("v_lshl_add_u32 v5, v6, 7, v5")
            a.e("s_and_b32 s82, s5, 1"); a.e("s_lshl_b32 s82, s82, 9"); a.e("s_add_u32 s82, s82, s101"); a.e("s_add_u32 s82, s82, 256")
            a.e(f"buffer_load_dword v28, v5, {sr(S_WB,4)}, s82 offen")
            a.e(f"buffer_load_dword v29, v4, {sr(S_X,4)}, s80 offen")

    def frag_addrs(dst, vrow, base_add, three=False):
        a.e(f"v_bfe_u32 v4, v{vrow}, 1, 2")
        a.e(f"v_bfe_u32 v5, v{vrow}, 4, 1")
        a.e("v_lshl_or_b32 v4, v5, 2, v4")
        a.e("v_xor_b32 v4, v4, v2")
        a.e(f"v_lshlrev_b32 v5, 7, v{vrow}")
        if base_add: a.e(f"v_add_u32 v5, {base_add}, v5")
        for kk in range(4):
            a.e(f"v_xor_b32 v6, {2*kk}, v4")
            a.e(f"v_lshl_add_u32 v{dst+kk}, v6, 4, v5")
            if three:
                a.e(f"v_add_u32 v{dst+4+kk}, {SB:#x}, v{dst+kk}")
                a.e(f"v_add_u32 v{dst+8+kk}, {2*SB:#x}, v{dst+kk}")
            else:
                a.e(f"v_add_u32 v{dst+4+kk}, {2*SB:#x}, v{dst+kk}")

    def nonce_issue(tag):
        a.e("s_cmp_lg_u32 s5, 0")
        a.e(f"s_cbranch_scc1 {L(tag+'_nn')}")
        srd(a, S_3, P_DBG, P_DBG + 1, 0, 256)
        a.e("s_memrealtime s[82:83]")
        a.e("s_waitcnt lgkmcnt(0)")
        a.e(f"s_or_b32 s{NONCE}, s82, 1")
        a.e(f"v_mov_b32 v30, s{NONCE}")
        a.e("v_mov_b32 v31, 0")
        a.e("v_mov_b32 v29, 0")
        a.e("s_mov_b64 exec, 1")
        a.e(f"buffer_atomic_cmpswap v[30:31], v29, {sr(S_3,4)}, 0 offen sc0")
        a.e("s_mov_b64 exec, -1")
        a.e(f"s_branch {L(tag+'_ne')}")
        a.lab(L(tag + '_nn'))
        a.e("v_mov_b32 v29, 0")
        a.e(f"buffer_load_dword v30, v29, {sr(S_X,4)}, 0 offen")
        a.lab(L(tag + '_ne'))

    def main_loop(glu):
        tg = 'g' if glu else 's'
        lg = Cnt(a, "lgkmcnt", 15)
        NU = 5 if glu else 4
        FSZ = 8 + 4 * NU
        FR = 32; XA, WA = 8, 16
        ACC = 96 if glu else 128
        def reads(step):
            s, kk = step >> 2, step & 3
            b = s % 3
            fb = FR + FSZ * (step & 1)
            boff = (b * SB) if b < 2 else 0
            xa = XA + kk + (4 if b == 2 else 0)
            istr = 4096 if glu else 1024
            out = []
            def X(i): out.append((f"ds_read_b128 {vr(fb+4*i,4)}, v{xa} offset:{boff + i*istr}", (step, 'x', i)))
            def W(u):
                if glu:
                    wa = WA + (1 if b == 2 else 0)
                    o = boff + kk * 2560 + u * 32
                    out.append((f"ds_read_b64_tr_b16 {vr(fb+8+4*u,2)}, v{wa} offset:{o}", (step, 'w', u)))
                    out.append((f"ds_read_b64_tr_b16 {vr(fb+8+4*u+2,2)}, v{wa} offset:{o+640}", (step, 'w', u)))
                else:
                    o = (u & 1) * 8192 + (u >> 1) * 4096
                    out.append((f"ds_read_b128 {vr(fb+8+4*u,4)}, v{WA+kk+4*b} offset:{o}", (step, 'w', u)))
            X(0); W(0); X(1)
            for u in range(1, NU): W(u)
            if (nc & 2) and step > 0: return []
            return out
        a.e("s_barrier")
        stamp_at(1)
        for ins, tag in reads(0): a.e(ins); lg.issue(tag)
        NS = 4 * NST
        for step in range(NS):
            s, kk = step >> 2, step & 3
            fb = FR + FSZ * (step & 1)
            nxt = reads(step + 1) if step + 1 < NS else []
            need_bar = (kk == 3 and s < NST - 1)
            nm = 2 * NU
            start_rd = 2 if need_bar else 0
            ri = 0
            for mi in range(nm):
                u, i = mi >> 1, mi & 1
                lg.wait((step, 'x', i)); lg.wait((step, 'w', u))
                acc = vr(ACC + 16 * (u * 2 + i), 16)
                cin = "0" if step == 0 else acc
                if (nc & 1) and step > 0: pass
                elif glu: a.e(f"v_mfma_f32_32x32x16_bf16 {acc}, {vr(fb+8+4*u,4)}, {vr(fb+4*i,4)}, {cin}")
                else:   a.e(f"v_mfma_f32_32x32x16_bf16 {acc}, {vr(fb+4*i,4)}, {vr(fb+8+4*u,4)}, {cin}")
                if need_bar and mi == start_rd - 1:
                    lg.wait_all()
                    a.e("s_barrier")
                    if bst in (1, 2, 3) and s < 6: a.e(f"s_memrealtime s[{88+2*s}:{89+2*s}]")
                    if bst == 4 and s == 3: a.e("s_memrealtime s[88:89]"); a.e("s_memtime s[92:93]")
                    if bst == 4 and s == 8: a.e("s_memrealtime s[90:91]"); a.e("s_memtime s[94:95]")
                if mi >= start_rd:
                    rem_m = nm - 2 - mi
                    rem_r = len(nxt) - ri
                    k = rem_r if rem_m <= 0 else -(-rem_r // (rem_m + 1))
                    for _ in range(k):
                        ins, tag = nxt[ri]; a.e(ins); lg.issue(tag); ri += 1
            assert ri == len(nxt)
            if step == 19: stamp_at(2)
        stamp_at(3)
        a.e("s_waitcnt vmcnt(0)")
        a.e("s_barrier")
        a.e(f"v_mov_b32 v31, {T_NONCE:#x}")
        a.e("ds_read_b32 v30, v31")
        return ACC

    def read_nonce_finish():
        a.e("s_waitcnt lgkmcnt(0)")
        a.e(f"v_readfirstlane_b32 s{NONCE}, v30")

    def a2_flag():
        a.e("s_lshl_b32 s80, s6, 2"); a.e("s_add_u32 s80, s80, s5"); a.e("s_lshl_b32 s80, s80, 5"); a.e("s_add_u32 s80, s80, s7")
        a.e("s_lshl_b32 s80, s80, 2"); a.e(f"s_add_u32 s80, s80, {FA_O:#x}")
        a.e(f"v_mov_b32 v2, s{NONCE}")
        a.e("v_mov_b32 v3, 0")
        a.e("s_waitcnt vmcnt(0)")
        a.e("s_mov_b64 exec, 1")
        a.e(f"buffer_store_dword v2, v3, {sr(S_SY,4)}, s80 offen sc1")
        a.e("s_mov_b64 exec, -1")

    b_setup(True)
    a.lab(L('cglu'))
    a.c("================ compute GLU")
    l2_prefetch(True)
    a.e("v_lshrrev_b32 v2, 5, v1")
    a.e("v_and_b32 v3, 31, v1")
    a.e("s_lshl_b32 s11, s5, 6")
    a.e("v_add_u32 v3, s11, v3")
    frag_addrs(8, 3, 0)
    a.e("v_bfe_u32 v4, v1, 4, 1")
    a.e(f"v_mul_u32_u24 v4, {U_OFF-G_OFF}, v4")
    a.e("v_bfe_u32 v5, v1, 2, 2")
    a.e("v_lshl_add_u32 v5, v2, 3, v5")
    a.e("v_mul_u32_u24 v5, 160, v5")
    a.e("v_and_b32 v6, 3, v1")
    a.e("v_lshl_add_u32 v5, v6, 3, v5")
    a.e("v_add_u32 v16, v4, v5")
    a.e(f"v_add_u32 v16, {G_OFF}, v16")
    a.e(f"v_add_u32 v17, {2*SB:#x}, v16")
    a.e("v_bfe_u32 v4, v1, 4, 1")
    a.e(f"v_mul_u32_u24 v18, {TS}, v4")
    a.e("v_lshl_add_u32 v18, v2, 8, v18")
    a.e("v_and_b32 v4, 15, v1")
    a.e("v_lshl_add_u32 v18, v4, 4, v18")
    a.e("v_lshlrev_b32 v19, 3, v3")
    a.e(f"v_add_u32 v19, {T_STAT:#x}, v19")
    a.e("v_lshlrev_b32 v20, 4, v2")
    a.e(f"v_add_u32 v20, {T_CS:#x}, v20")
    a.e("s_lshl_b32 s12, s6, 4"); a.e("s_lshl_b32 s13, s5, 2"); a.e("s_add_u32 s12, s12, s13")
    a.e(f"s_mul_i32 s12, s12, {TS}")
    a.e("s_lshl_b32 s13, s10, 9"); a.e("s_add_u32 s12, s12, s13")
    a.e(f"s_add_u32 s12, s12, {40*1024}")
    a.e(f"s_add_u32 s13, s12, {2*TS}")
    if prio: a.e(f"s_setprio {prio}")
    ACC = main_loop(True)
    a.e("ds_read_b64 v[22:23], v19")
    a.e("ds_read_b64 v[24:25], v19 offset:256")
    CS = 32
    lg = Cnt(a, "lgkmcnt", 15); lg.issue('st', 3)
    def cs_reads(u):
        b = CS + 16 * (u % 3)
        for q in range(2):
            a.e(f"ds_read_b128 {vr(b+4*q,4)}, v20 offset:{(16*u+8*q)*4}"); lg.issue(('cs', u))
            a.e(f"ds_read_b128 {vr(b+8+4*q,4)}, v20 offset:{320+(16*u+8*q)*4}"); lg.issue(('cs', u))
    cs_reads(0); cs_reads(1)
    lg.wait('st')
    a.e("v_mul_f32 v23, v23, v23")
    a.e("v_mul_f32 v25, v25, v25")
    a.e(f"v_readfirstlane_b32 s{NONCE}, v30")
    OUT = 80; oi = 0
    for u in range(5):
        if u + 2 < 5: cs_reads(u + 2)
        lg.wait(('cs', u))
        b = CS + 16 * (u % 3)
        for i in range(2):
            A_ = ACC + 16 * (u * 2 + i); st = 22 + 2 * i
            for r in range(0, 16, 2):
                a.e(f"v_pk_fma_f32 {vr(A_+r,2)}, {vr(st,2)}, {vr(b+r,2)}, {vr(A_+r,2)} op_sel:[0,0,0] op_sel_hi:[0,1,1] neg_lo:[1,0,0] neg_hi:[1,0,0]")
            for r in range(0, 8, 2):
                a.e(f"v_pk_mul_f32 {vr(A_+r,2)}, {vr(A_+r,2)}, {vr(A_+8+r,2)}")
            for r in range(0, 8, 2):
                a.e(f"v_pk_mul_f32 {vr(A_+r,2)}, {vr(A_+r,2)}, {vr(st,2)} op_sel:[0,1] op_sel_hi:[1,1]")
            o = OUT + 4 * (oi % 4); oi += 1
            for r in range(4): a.e(f"v_cvt_pk_bf16_f32 v{o+r}, v{A_+2*r}, v{A_+2*r+1}")
            a.e(f"buffer_store_dwordx4 {vr(o,4)}, v18, {sr(S_A2,4)}, s{12+i} offen offset:{u*512} sc1")
    stamp_at(4)
    if dly: a.e("s_barrier")
    a2_flag()
    stamp_at(7)
    stamp_out(0, 8)
    a.e(f"s_branch {L('p2c')}")

    a.lab(L('ssm_b'))
    b_setup(False)
    a.lab(L('cssm'))
    a.c("================ compute SSM")
    a.e("v_and_b32 v7, 31, v1")
    a.e("s_lshl_b32 s11, s7, 6"); a.e("v_add_u32 v3, s11, v7"); a.e("v_lshlrev_b32 v3, 1, v3")
    PRM = 80
    for k, P_ in enumerate((P_LRE, P_LIM, P_LDT)):
        srd(a, S_1, P_, P_ + 1, 0, 1280)
        for P in range(2):
            a.e(f"buffer_load_ushort v{PRM+3*P+k}, v3, {sr(S_1,4)}, 0 offen offset:{64*P}")
    l2_prefetch(False)
    a.e("v_lshrrev_b32 v2, 5, v1")
    a.e("v_and_b32 v7, 31, v1")
    a.e("v_bfe_u32 v3, v7, 2, 1"); a.e("v_lshlrev_b32 v3, 5, v3")
    a.e("v_and_b32 v4, 1, v7"); a.e("v_lshl_or_b32 v3, v4, 4, v3")
    a.e("v_bfe_u32 v4, v7, 3, 2"); a.e("v_lshl_or_b32 v3, v4, 1, v3")
    a.e("v_bfe_u32 v4, v7, 1, 1"); a.e("v_or_b32 v3, v3, v4")
    a.e("s_lshl_b32 s11, s5, 6"); a.e("v_add_u32 v3, s11, v3")
    frag_addrs(8, 3, 0)
    frag_addrs(16, 7, BRE_OFF, three=True)
    a.e("s_lshl_b32 s11, s5, 8")
    a.e("v_lshl_add_u32 v108, v2, 7, s11"); a.e(f"v_add_u32 v108, {T_STAT:#x}, v108")
    a.e("v_lshlrev_b32 v109, 2, v7"); a.e(f"v_add_u32 v109, {T_CS:#x}, v109")
    a.e("s_lshl_b32 s11, s5, 4")
    a.e("v_lshl_add_u32 v110, v2, 3, s11"); a.e("v_lshl_add_u32 v110, v7, 6, v110")
    a.e("v_lshlrev_b32 v111, 6, v1")
    IMG = 16384
    a.e("s_mul_i32 s11, s5, 18432"); a.e(f"s_add_u32 s11, s11, {IMG}")
    a.e("v_mul_u32_u24 v112, 144, v7"); a.e("v_lshl_add_u32 v112, v2, 6, v112"); a.e("v_add_u32 v112, s11, v112")
    a.e("v_lshrrev_b32 v4, 4, v1"); a.e("v_bfe_u32 v5, v1, 2, 2"); a.e("v_lshl_add_u32 v4, v4, 3, v5")
    a.e("v_mul_u32_u24 v113, 144, v4"); a.e("v_and_b32 v4, 3, v1"); a.e("v_lshl_add_u32 v113, v4, 3, v113"); a.e("v_add_u32 v113, s11, v113")
    a.e("v_lshlrev_b32 v114, 4, v1")
    a.e("s_lshl_b32 s12, s6, 4"); a.e("s_lshl_b32 s13, s5, 2"); a.e("s_add_u32 s12, s12, s13")
    a.e(f"s_mul_i32 s12, s12, {TS}")
    a.e("s_lshl_b32 s13, s7, 11"); a.e("s_add_u32 s12, s12, s13")
    AC = 88
    a.e(f"s_waitcnt vmcnt({2 if pf else 0})")
    for P in range(2):
        o = AC + 8 * P
        gen_abar(a, PRM + 3 * P, PRM + 3 * P + 1, PRM + 3 * P + 2, o, 116)
        lr, li_ = PRM + 3 * P, PRM + 3 * P + 1
        a.e(f"v_add_f32 v116, -1.0, v{o}")
        a.e(f"v_mul_f32 v117, v{lr}, v{lr}"); a.e(f"v_fmac_f32 v117, v{li_}, v{li_}")
        a.e("v_rcp_f32 v117, v117")
        a.e(f"v_mul_f32 v118, v116, v{lr}"); a.e(f"v_fmac_f32 v118, v{o+1}, v{li_}")
        a.e(f"v_mul_f32 v119, v{o+1}, v{lr}"); a.e(f"v_fma_f32 v119, -v116, v{li_}, v119")
        a.e("v_add_f32 v117, v117, v117")
        a.e(f"v_mul_f32 v{o+6}, v118, v117"); a.e(f"v_mul_f32 v{o+7}, v119, v117")
        csq(a, o + 2, o, 116)
        for _ in range(3): csq(a, o + 2, o + 2, 116)
        csq(a, o + 4, o + 2, 116)
        for _ in range(3): csq(a, o + 4, o + 4, 116)
    a.e("v_cmp_eq_u32 vcc, 1, v2")
    a.e("s_nop 1")
    for k in range(4): a.e(f"v_cndmask_b32 v{104+k}, v{AC+2+k}, v{AC+8+2+k}, vcc")
    if prio: a.e(f"s_setprio {prio}")
    ACC = main_loop(False)
    accr = lambda P, pl, i: ACC + 16 * ((P * 2 + pl) * 2 + i)
    MEAN, RSTD = 32, 0
    MEAN, RSTD = 16, 48
    a.e("s_waitcnt lgkmcnt(0)")
    a.e(f"v_readfirstlane_b32 s{NONCE}, v30")
    for k in range(8): a.e(f"ds_read_b128 {vr(MEAN+4*k,4)}, v108 offset:{16*k}")
    for k in range(4): a.e(f"ds_read_b32 v{80+k}, v109 offset:{(k&1)*256 + (k>>1)*128}")
    a.e("s_waitcnt lgkmcnt(0)")
    for k in range(8): a.e(f"ds_read_b128 {vr(RSTD+4*k,4)}, v108 offset:{1024+16*k}")
    for P in range(2):
        for pl in range(2):
            for i in range(2):
                A_ = accr(P, pl, i)
                for r in range(0, 16, 2):
                    a.e(f"v_pk_fma_f32 {vr(A_+r,2)}, {vr(MEAN+16*i+r,2)}, {vr(80+2*P,2)}, {vr(A_+r,2)} op_sel:[0,{pl},0] op_sel_hi:[1,{pl},1] neg_lo:[1,0,0] neg_hi:[1,0,0]")
    a.e("s_waitcnt lgkmcnt(0)")
    H = 8; T = 116
    def scan_step(P, ure, uim, hre, him, dre, dim):
        ap = vr(AC + 8 * P, 2); t0, t1 = T + 4 * P, T + 4 * P + 2
        a.e(f"v_pk_fma_f32 {vr(t0,2)}, {ap}, {vr(him,2)}, {vr(ure,2)} op_sel:[1,0,0] op_sel_hi:[1,1,1] neg_lo:[1,0,0] neg_hi:[1,0,0]")
        a.e(f"v_pk_fma_f32 {vr(t1,2)}, {ap}, {vr(hre,2)}, {vr(uim,2)} op_sel:[1,0,0] op_sel_hi:[1,1,1]")
        return [f"v_pk_fma_f32 {vr(dre,2)}, {ap}, {vr(hre,2)}, {vr(t0,2)} op_sel:[0,0,0] op_sel_hi:[0,1,1]",
                f"v_pk_fma_f32 {vr(dim,2)}, {ap}, {vr(him,2)}, {vr(t1,2)} op_sel:[0,0,0] op_sel_hi:[0,1,1]"]
    for i in range(2):
        for pi in range(8):
            r = 2 * pi
            for P in range(2):
                for pl in range(2):
                    A_ = accr(P, pl, i) + r
                    a.e(f"v_pk_mul_f32 {vr(A_,2)}, {vr(A_,2)}, {vr(RSTD+16*i+r,2)}")
            if i == 0 and pi == 0: continue
            post = []
            for P in range(2):
                hre, him = (accr(P, 0, 0), accr(P, 1, 0)) if (i == 0 and pi == 1) else (H + 4 * P, H + 4 * P + 2)
                post += scan_step(P, accr(P, 0, i) + r, accr(P, 1, i) + r, hre, him, H + 4 * P, H + 4 * P + 2)
            for x in post: a.e(x)
    for P in range(2):
        a.e(f"ds_write_b64 v110, {vr(H+4*P,2)} offset:{P*2048}")
        a.e(f"ds_write_b64 v110, {vr(H+4*P+2,2)} offset:{4096+P*2048}")
    a.e("s_waitcnt lgkmcnt(0)")
    a.e("s_barrier")
    stamp_at(4)
    def cmul_pairs(P, re, im):
        cp = vr(AC + 8 * P + 6, 2); t0, t1 = T + 4 * P, T + 4 * P + 2
        a.e(f"v_pk_mul_f32 {vr(t0,2)}, {cp}, {vr(im,2)} op_sel:[1,0] op_sel_hi:[1,1]")
        a.e(f"v_pk_mul_f32 {vr(t1,2)}, {cp}, {vr(re,2)} op_sel:[1,0] op_sel_hi:[1,1]")
        return [f"v_pk_fma_f32 {vr(re,2)}, {cp}, {vr(re,2)}, {vr(t0,2)} op_sel:[0,0,0] op_sel_hi:[0,1,1] neg_lo:[0,0,1] neg_hi:[0,0,1]",
                f"v_pk_fma_f32 {vr(im,2)}, {cp}, {vr(im,2)}, {vr(t1,2)} op_sel:[0,0,0] op_sel_hi:[0,1,1]"]
    def scale_u():
        for i in range(2):
            for r in range(0, 16, 2):
                post = []
                for P in range(2): post += cmul_pairs(P, accr(P, 0, i) + r, accr(P, 1, i) + r)
                for x in post: a.e(x)
    a.e("s_cmp_eq_u32 s5, 0")
    a.e(f"s_cbranch_scc1 {L('ssm_w0')}")
    scale_u()
    a.e(f"s_branch {L('ssm_wait')}")
    a.lab(L('ssm_w0'))
    ER, EI, CR, CI = 16, 32, 48, 64
    for k in range(4):
        a.e(f"ds_read_b128 {vr(ER+4*k,4)}, v111 offset:{16*k}")
        a.e(f"ds_read_b128 {vr(EI+4*k,4)}, v111 offset:{4096+16*k}")
    a.e("s_waitcnt lgkmcnt(0)")
    def cfma(dr, di, ar_, hr, hi, ur, ui, t):
        a.e(f"v_fma_f32 v{t}, -v{ar_+1}, v{hi}, v{ur}")
        a.e(f"v_fma_f32 v{t+1}, v{ar_+1}, v{hr}, v{ui}")
        a.e(f"v_fma_f32 v{dr}, v{ar_}, v{hr}, v{t}")
        a.e(f"v_fma_f32 v{di}, v{ar_}, v{hi}, v{t+1}")
    cfma(8, 10, 104, ER, EI, ER + 1, EI + 1, T)
    for j in range(2, 16): cfma(8, 10, 104, 8, 10, ER + j, EI + j, T)
    a.e(f"v_mov_b32 v9, s{NONCE}"); a.e(f"v_mov_b32 v11, s{NONCE}")
    a.e("s_lshl_b32 s13, s7, 13"); a.e(f"s_add_u32 s13, s13, {LB_O:#x}")
    a.e("s_lshl_b32 s80, s6, 10"); a.e("s_add_u32 s80, s80, s13")
    a.e(f"buffer_store_dwordx4 v[8:11], v114, {sr(S_SY,4)}, s80 offen sc1")
    scale_u()
    a.e(f"v_mov_b32 v{CR}, 0"); a.e(f"v_mov_b32 v{CI}, 0")
    a.e("s_cmp_eq_u32 s6, 0")
    a.e(f"s_cbranch_scc1 {L('lb_done')}")
    a.e("s_mov_b32 s80, 0")
    a.e("s_add_u32 s81, s13, 4096")
    a.lab(L('poll'))
    GB = [52, 56, 60, 68, 72, 76, 12]
    for j in range(7):
        a.e(f"buffer_load_dwordx4 {vr(GB[j],4)}, v114, {sr(S_SY,4)}, s{13 if j < 4 else 81} offen offset:{(j&3)*1024} sc1")
    a.e("s_waitcnt vmcnt(0)")
    a.e("s_mov_b64 s[82:83], 0")
    for j in range(7):
        a.e(f"s_cmp_le_u32 s6, {j}")
        a.e(f"s_cbranch_scc1 {L('chk_end')}")
        a.e(f"v_cmp_ne_u32 vcc, s{NONCE}, v{GB[j]+1}"); a.e("s_or_b64 s[82:83], s[82:83], vcc")
        a.e(f"v_cmp_ne_u32 vcc, s{NONCE}, v{GB[j]+3}"); a.e("s_or_b64 s[82:83], s[82:83], vcc")
    a.lab(L('chk_end'))
    a.e("s_cmp_eq_u64 s[82:83], 0")
    a.e(f"s_cbranch_scc1 {L('poll_ok')}")
    a.e("s_add_u32 s80, s80, 1")
    a.e(f"s_cmp_lt_u32 s80, {SPIN:#x}")
    a.e(f"s_cbranch_scc0 {L('poll_ok')}")
    a.e("s_sleep 1")
    a.e(f"s_branch {L('poll')}")
    a.lab(L('poll_ok'))
    for j in range(7):
        a.e(f"s_cmp_le_u32 s6, {j}")
        a.e(f"s_cbranch_scc1 {L('lb_done')}")
        cfma(CR, CI, 106, CR, CI, GB[j], GB[j] + 2, T)
    a.lab(L('lb_done'))
    stamp_at(5)
    for j in range(15): cfma(CR + j + 1, CI + j + 1, 104, CR + j, CI + j, ER + j, EI + j, T)
    for k in range(4):
        a.e(f"ds_write_b128 v111, {vr(CR+4*k,4)} offset:{8192+16*k}")
        a.e(f"ds_write_b128 v111, {vr(CI+4*k,4)} offset:{12288+16*k}")
    a.e("s_waitcnt lgkmcnt(0)")
    a.lab(L('ssm_wait'))
    a.e("s_barrier")
    for P in range(2):
        a.e(f"ds_read_b64 {vr(H+4*P,2)}, v110 offset:{8192+P*2048}")
        a.e(f"ds_read_b64 {vr(H+4*P+2,2)}, v110 offset:{12288+P*2048}")
    a.e("s_waitcnt lgkmcnt(0)")
    post = []
    for P in range(2): post += cmul_pairs(P, H + 4 * P, H + 4 * P + 2)
    for x in post: a.e(x)
    for i in range(2):
        for pi in range(8):
            r = 2 * pi; post = []
            for P in range(2):
                if i == 0 and pi == 0: hre, him = H + 4 * P, H + 4 * P + 2
                elif pi == 0: hre, him = accr(P, 0, 0) + 14, accr(P, 1, 0) + 14
                else: hre, him = accr(P, 0, i) + r - 2, accr(P, 1, i) + r - 2
                post += scan_step(P, accr(P, 0, i) + r, accr(P, 1, i) + r, hre, him, accr(P, 0, i) + r, accr(P, 1, i) + r)
            for x in post: a.e(x)
        for P in range(2):
            for pl in range(2):
                for e_ in range(2):
                    A_ = accr(P, pl, i); o = 16 + 4 * ((P * 2 + pl) * 2 + e_) + 32 * i
                    for k in range(4): a.e(f"v_cvt_pk_bf16_f32 v{o+k}, {'-' if pl else ''}v{A_+4*k+e_}, {'-' if pl else ''}v{A_+4*k+2+e_}")
                    a.e(f"ds_write_b128 v112, {vr(o,4)} offset:{pl*9216 + P*32*144 + 32*e_ + 16*i}")
    a.e("s_waitcnt lgkmcnt(0)")
    R = 128; n = 0; lg = Cnt(a, "lgkmcnt", 15); fr = []
    def st_frag(m, r2, tq2, pl2, P2):
        lg.wait(m)
        if pl2 == 0 and P2 == 0:
            a.e(f"s_add_u32 s13, s12, {tq2*TS}"); a.e(f"s_add_u32 s80, s13, {20*1024}")
        a.e(f"buffer_store_dwordx4 {vr(r2,4)}, v114, {sr(S_A2,4)}, s{13 if pl2 == 0 else 80} offen offset:{P2*1024} sc1")
    for tq in range(4):
        for pl in range(2):
            for P in range(2):
                o = pl * 9216 + P * 32 * 144 + tq * 32; rr = R + 4 * n
                a.e(f"ds_read_b64_tr_b16 {vr(rr,2)}, v113 offset:{o}"); lg.issue(n)
                a.e(f"ds_read_b64_tr_b16 {vr(rr+2,2)}, v113 offset:{o+576}"); lg.issue(n)
                fr.append((n, rr, tq, pl, P)); n += 1
                if n >= 4: st_frag(*fr.pop(0))
    for f in fr: st_frag(*f)
    a.e("s_barrier")
    stamp_at(6)
    a2_flag()
    stamp_at(7)
    stamp_out(0, 8)

    a.lab(L('p2c'))
    a.c("================ phase-2 compute")
    ph[0] = 1
    stamp_at(0)
    def k2rot(dst):
        if not rot2: a.e(f"s_mov_b32 s{dst}, 0"); return
        a.e("s_and_b32 s80, s4, 3"); a.e(f"s_mul_i32 s80, s80, {14 if rot2 == 1 else 2*rot2}"); a.e("s_lshr_b32 s81, s4, 2"); a.e(f"s_mul_i32 s81, s81, {6 if rot2 == 1 else 0}"); a.e(f"s_add_u32 s{dst}, s80, s81")
        a.e(f"s_sub_u32 s80, s{dst}, 54"); a.e(f"s_cmp_ge_u32 s{dst}, 54"); a.e(f"s_cselect_b32 s{dst}, s80, s{dst}")
    def k2map():
        a.e("s_lshr_b32 s12, s4, 2"); a.e("s_lshr_b32 s13, s3, 1"); a.e("s_lshl_b32 s13, s13, 3"); a.e("s_add_u32 s12, s12, s13")
        a.e("s_and_b32 s13, s3, 1"); a.e("s_lshl_b32 s13, s13, 2"); a.e("s_and_b32 s80, s4, 3"); a.e("s_add_u32 s13, s13, s80")
    k2map()
    S_D, S_O = S_1, S_2
    srd(a, S_D, P_DSK, P_DSK + 1, 0, 1280)
    srd(a, S_O, P_OUT, P_OUT + 1, 0, 2048 * 2560)
    a.e("v_lshlrev_b32 v3, 4, v1")
    a.e("s_and_b32 s10, s5, 1"); a.e("s_lshr_b32 s11, s5, 1")
    a.e("s_lshl_b32 s6, s12, 2"); a.e("s_lshl_b32 s80, s10, 1"); a.e("s_add_u32 s6, s6, s80")
    a.e(f"s_mul_i32 s7, s6, {TS}"); a.e("s_lshl_b32 s80, s11, 10"); a.e("s_add_u32 s7, s7, s80")
    a.e("s_add_u32 s6, s6, s11")
    a.e(f"v_add_u32 v2, {TS:#x}, v3")
    NWB = 2; AF = 16; WF = AF + 8 * AD; AC2 = WF + 20 * NWB; EP = AC2 + 40
    VX, VD, VS, VB, T2 = EP, EP + 10, EP + 20, EP + 24, EP + 44
    vm = Cnt(a, "vmcnt", 63); lg = Cnt(a, "lgkmcnt", 15)
    a.e("v_and_b32 v4, 15, v1"); a.e("s_lshl_b32 s80, s6, 4"); a.e("v_add_u32 v4, s80, v4")
    a.e("v_lshrrev_b32 v5, 4, v1"); a.e("v_lshlrev_b32 v5, 2, v5"); a.e("s_mul_i32 s80, s13, 80"); a.e("v_add_u32 v5, s80, v5")
    a.e("v_mul_u32_u24 v6, 640, v4"); a.e("v_add_u32 v6, v6, v5")
    a.e("v_lshlrev_b32 v7, 2, v6"); a.e("v_lshlrev_b32 v6, 1, v6"); a.e("v_lshlrev_b32 v5, 1, v5"); a.e("v_lshlrev_b32 v4, 4, v4")
    for j in range(5):
        a.e(f"buffer_load_dwordx2 {vr(VX+2*j,2)}, v6, {sr(S_X,4)}, 0 offen offset:{32*j}")
        a.e(f"buffer_load_dwordx2 {vr(VD+2*j,2)}, v5, {sr(S_D,4)}, 0 offen offset:{32*j}")
    a.e("v_and_b32 v10, 31, v1"); a.e("v_lshlrev_b32 v10, 2, v10")
    a.e("s_lshl_b32 s9, s12, 7"); a.e(f"s_add_u32 s9, s9, {FA_O:#x}")
    def poll_a2(tag, mask):
        a.e("s_mov_b32 s80, 0")
        a.lab(L(tag))
        a.e(f"buffer_load_dword v11, v10, {sr(S_SY,4)}, s9 offen sc1")
        a.e("s_waitcnt vmcnt(0)")
        a.e(f"v_cmp_ne_u32 vcc, s{NONCE}, v11")
        a.e(f"s_and_b32 s82, vcc_lo, {mask:#x}")
        a.e(f"s_cbranch_scc0 {L(tag+'_ok')}")
        a.e("s_add_u32 s80, s80, 1")
        a.e(f"s_cmp_lt_u32 s80, {SPIN:#x}")
        a.e(f"s_cbranch_scc0 {L(tag+'_ok')}")
        a.e("s_sleep 2")
        a.e(f"s_branch {L(tag)}")
        a.lab(L(tag + '_ok'))
        vm.q = []
    k2rot(0)
    def aload(u):
        if u < 27:
            a.e("s_lshl_b32 s80, s0, 10"); a.e("s_add_u32 s80, s80, s7"); a.e(f"s_add_u32 s80, s80, {40*1024}")
            a.e("s_add_u32 s0, s0, 2"); a.e("s_cmp_eq_u32 s0, 54"); a.e("s_cselect_b32 s0, 0, s0")
        else: a.e(f"s_add_u32 s80, s7, {KS[2*u]*1024}")
        if (x2 & 1) and u >= AD: return
        for i in range(2):
            a.e(f"buffer_load_dwordx4 {vr(AF+8*(u%AD)+4*i,4)}, v{3 if i == 0 else 2}, {sr(S_A2,4)}, s80 offen {'' if nosc else 'sc1'}")
        vm.issue(('a', u), 2)
    def base_calc():
        mean, rstd = VS, VS + 2
        for j in range(5):
            x0, x1, d0, d1 = VX + 2*j, VX + 2*j + 1, VD + 2*j, VD + 2*j + 1
            X = VB + 4 * j; Dd = T2; t = T2 + 4
            a.e(f"v_lshlrev_b32 v{X}, 16, v{x0}"); a.e(f"v_and_b32 v{X+1}, 0xffff0000, v{x0}")
            a.e(f"v_lshlrev_b32 v{X+2}, 16, v{x1}"); a.e(f"v_and_b32 v{X+3}, 0xffff0000, v{x1}")
            a.e(f"v_lshlrev_b32 v{Dd}, 16, v{d0}"); a.e(f"v_and_b32 v{Dd+1}, 0xffff0000, v{d0}")
            a.e(f"v_lshlrev_b32 v{Dd+2}, 16, v{d1}"); a.e(f"v_and_b32 v{Dd+3}, 0xffff0000, v{d1}")
            for k in range(4): a.e(f"v_sub_f32 v{t+k}, v{X+k}, v{mean}")
            def rnd():
                a.e(f"v_cvt_pk_bf16_f32 v{t+4}, v{t}, v{t+1}"); a.e(f"v_cvt_pk_bf16_f32 v{t+5}, v{t+2}, v{t+3}")
                a.e(f"v_lshlrev_b32 v{t}, 16, v{t+4}"); a.e(f"v_and_b32 v{t+1}, 0xffff0000, v{t+4}")
                a.e(f"v_lshlrev_b32 v{t+2}, 16, v{t+5}"); a.e(f"v_and_b32 v{t+3}, 0xffff0000, v{t+5}")
            rnd()
            for k in range(4): a.e(f"v_mul_f32 v{t+k}, v{t+k}, v{rstd}")
            rnd()
            for k in range(4): a.e(f"v_mul_f32 v{t+k}, v{t+k}, v{Dd+k}")
            rnd()
            for k in range(4): a.e(f"v_add_f32 v{X+k}, v{t+k}, v{X+k}")
    a.e("v_lshrrev_b32 v12, 5, v1"); a.e("v_lshlrev_b32 v12, 4, v12"); a.e("v_bfe_u32 v13, v1, 4, 1"); a.e("v_lshl_add_u32 v12, v13, 2, v12")
    a.e("v_bfe_u32 v13, v1, 2, 2"); a.e("v_add_u32 v12, v12, v13"); a.e("v_mul_u32_u24 v12, 160, v12")
    a.e("v_and_b32 v13, 3, v1"); a.e("v_lshl_add_u32 v12, v13, 3, v12"); a.e("s_mul_i32 s80, s11, 5120"); a.e("v_add_u32 v12, s80, v12")
    a.e("v_lshrrev_b32 v13, 4, v1"); a.e("v_and_b32 v14, 7, v1"); a.e("v_xor_b32 v13, v13, v14"); a.e("s_lshl_b32 s80, s11, 2"); a.e("v_xor_b32 v13, s80, v13")
    a.e("v_and_b32 v15, 15, v1"); a.e("v_lshlrev_b32 v15, 7, v15"); a.e("v_lshl_add_u32 v13, v13, 4, v15")
    RA = T2 + 10
    for k, r in enumerate((12, 13)):
        a.e(f"v_mov_b32 v{RA+3*k}, v{r}"); a.e(f"v_add_u32 v{RA+3*k+1}, 0x10000, v{r}"); a.e(f"v_add_u32 v{RA+3*k+2}, 0x20000, v{r}")
    XB = 40960
    a.e("s_mul_i32 s80, s5, 5120"); a.e(f"s_add_u32 s80, s80, {XB}"); a.e("v_add_u32 v14, s80, v3")
    a.e("s_xor_b32 s80, s5, 2"); a.e("s_mul_i32 s80, s80, 5120"); a.e(f"s_add_u32 s80, s80, {XB}"); a.e("v_add_u32 v15, s80, v3")
    def wreads(u):
        s, k2 = divmod(u, 2)
        off = ((s + SLOT0) % RING) * SPS * 5120 + k2 * 10240
        out = []
        for j in range(5):
            d = WF + 20 * (u % NWB) + 4 * j
            if u < 27:
                for hf in range(2):
                    o = off + j * 32 + hf * 8 * 160
                    out.append((f"ds_read_b64_tr_b16 {vr(d+2*hf,2)}, v{RA + (o >> 16)} offset:{o & 65535}", ('w', u, j)))
            else:
                o = off + j * 2048
                out.append((f"ds_read_b128 {vr(d,4)}, v{RA + 3 + (o >> 16)} offset:{o & 65535}", ('w', u, j)))
        return out
    poll_a2('pollg', 0xfffffc00)
    stamp_at(1)
    for u in range(AD - 1): aload(u)
    a.e("s_barrier")
    stamp_at(2)
    if clk: a.e("s_memtime s[84:85]")
    for ins, tag in wreads(0): a.e(ins); lg.issue(tag)
    for u in range(47):
        nxt = wreads(u + 1) if u + 1 < 47 else []
        if nxt and (u + 1) % 2 == 0:
            a.e("s_barrier")
        vm.wait(('a', u))
        per = len(nxt) // 5
        for j in range(5):
            lg.wait(('w', u, j))
            for i in range(2):
                acc = vr(AC2 + 20 * i + 4 * j, 4)
                if not (x2 & 4) or u == 0: a.e(f"v_mfma_f32_16x16x32_bf16 {acc}, {vr(WF+20*(u%NWB)+4*j,4)}, {vr(AF+8*(u%AD)+4*i,4)}, {'0' if u == 0 else acc}")
                if i < per: x = nxt[j*per + i]; a.e(x[0]); lg.issue(x[1])
        un = u + AD - 1
        if un == 27:
            stamp_at(3)
            poll_a2('polls', 0x3ff)
            stamp_at(4)
            a.e(f"buffer_load_dwordx4 {vr(VS,4)}, v4, {sr(S_SY,4)}, 0 offen sc1"); vm.issue('vs')
        if un < 47: aload(un)
        if u == 30:
            vm.wait('vs')
            base_calc()
    stamp_at(5)
    if clk: a.e("s_memtime s[86:87]")
    a.e("s_cmp_eq_u32 s11, 0")
    a.e(f"s_cbranch_scc1 {L('xk0')}")
    a.e("s_nop 6")
    for j in range(5): a.e(f"ds_write_b128 v14, {vr(AC2+4*j,4)} offset:{1024*j}")
    for r in range(20): a.e(f"v_add_f32 v{VB+r}, v{VB+r}, v{AC2+20+r}")
    a.e(f"s_branch {L('xk1')}")
    a.lab(L('xk0'))
    a.e("s_nop 6")
    for j in range(5): a.e(f"ds_write_b128 v14, {vr(AC2+20+4*j,4)} offset:{1024*j}")
    for r in range(20): a.e(f"v_add_f32 v{VB+r}, v{VB+r}, v{AC2+r}")
    a.lab(L('xk1'))
    a.e("s_waitcnt lgkmcnt(0)")
    a.e("s_barrier")
    for j in range(5): a.e(f"ds_read_b128 {vr(WF+4*j,4)}, v15 offset:{1024*j}")
    for j in range(5):
        b = WF + 4 * j
        a.e(f"s_waitcnt lgkmcnt({4-j})")
        a.e(f"v_pk_add_f32 {vr(b,2)}, {vr(b,2)}, {vr(VB+4*j,2)}")
        a.e(f"v_pk_add_f32 {vr(b+2,2)}, {vr(b+2,2)}, {vr(VB+4*j+2,2)}")
        a.e(f"buffer_store_dwordx4 {vr(b,4)}, v7, {sr(S_O,4)}, 0 offen offset:{64*j} {outflag}")
    if stamp:
        stamp_at(6)
        a.e("s_waitcnt vmcnt(0)")
        stamp_at(7)
        stamp_out(1, 8)
    a.e("s_endpgm")

    def helper(glu):
        ph[0] = 2
        tg = 'hg' if glu else 'hs'
        vm = Cnt(a, "vmcnt", 63)
        NB = 5 if glu else 4
        bstep = 64 * 3456 if glu else 128
        vm.issue(('st', 0), 8 + NB)
        def dma_groups(s):
            b = s % 3
            g = []
            pre = ["s_add_u32 s0, s0, 1", "s_cmp_eq_u32 s0, 10", "s_cselect_b32 s0, 0, s0", "s_lshl_b32 s1, s0, 7", "s_add_u32 s1, s1, s12"]
            for j in range(8):
                if j in (0, 4): pre += [f"s_add_u32 m0, s13, {b*SB + (4096 if j >= 4 else 0)}", "s_nop 0"]
                g.append(pre + [f"buffer_load_dwordx4 v{DA+j}, {sr(S_X,4)}, s1 offen offset:{(j&3)*1024} lds"]); pre = []
            pre = [f"s_mul_i32 s1, s0, {bstep}", "s_add_u32 s1, s1, s101"]
            for jj in range(NB):
                if jj in (0, 4): pre += [f"s_add_u32 m0, s100, {b*SB + (4096 if jj >= 4 else 0)}", "s_nop 0"]
                g.append(pre + [f"buffer_load_dwordx4 v{DB+jj}, {sr(S_WB,4)}, s1 offen offset:{(jj&3)*1024} lds"]); pre = []
            return g
        def dma(s):
            for g in dma_groups(s):
                for x in g: a.e(x)
            vm.issue(('st', s), 8 + NB)
        def weave(s, start, track=True):
            work = a.lines[start:]; del a.lines[start:]
            gs = dma_groups(s)
            per = -(-len(work) // len(gs))
            for i, g in enumerate(gs):
                for x in g: a.e(x)
                a.lines += work[i*per:(i+1)*per]
            if track: vm.issue(('st', s), 8 + NB)
        def hst3(k):
            if bst == 3: a.e(f"s_memrealtime s[{84+2*k}:{85+2*k}]")
        def hst(b, mode):
            if bst == mode and b < 6: a.e(f"s_memrealtime s[{88+2*b}:{89+2*b}]")
        XU = 108; RS = 8; CSD = 160; CA = 128
        WD1, WD2 = 64, 72
        a.e("s_lshl_b32 s80, s6, 8"); a.e("s_lshl_b32 s81, s7, 3"); a.e("s_add_u32 s80, s80, s81"); a.e("s_lshl_b32 s81, s14, 1"); a.e("s_add_u32 s80, s80, s81")
        a.e("v_lshrrev_b32 v2, 5, v1"); a.e("v_add_u32 v100, s80, v2")
        a.e("v_mul_u32_u24 v2, 1280, v100"); a.e("v_and_b32 v3, 31, v1"); a.e("v_lshl_add_u32 v2, v3, 3, v2")
        for i in range(5):
            a.e(f"buffer_load_dwordx2 {vr(RS+2*i,2)}, v2, {sr(S_X,4)}, 0 offen offset:{256*i}")
        vm.issue('side', 5)
        if glu:
            a.e("s_mul_i32 s80, s6, 80"); a.e("s_and_b32 s81, s14, 1"); a.e("s_mul_i32 s81, s81, 40"); a.e("s_add_u32 s80, s80, s81")
            a.e("v_lshrrev_b32 v2, 4, v1"); a.e("v_add_u32 v2, s80, v2"); a.e("v_mul_u32_u24 v2, 3456, v2")
            a.e("v_and_b32 v3, 15, v1"); a.e("v_min_u32 v3, 9, v3"); a.e("v_lshl_add_u32 v102, v3, 4, v2")
            for i in range(10):
                a.e(f"s_add_u32 s83, s101, {4*i*3456}")
                a.e(f"buffer_load_dwordx4 {vr(CSD+4*i,4)}, v102, {sr(S_WB,4)}, s83 offen")
            vm.issue('side', 10)
        else:
            a.e("s_and_b32 s81, s14, 1"); a.e("s_lshl_b32 s81, s81, 5")
            a.e("v_and_b32 v2, 15, v1"); a.e("v_add_u32 v2, s81, v2"); a.e("v_mul_u32_u24 v2, 1280, v2")
            a.e("s_mul_i32 s80, s6, 160"); a.e("v_add_u32 v2, s80, v2")
            a.e("v_lshrrev_b32 v3, 4, v1"); a.e("v_lshl_add_u32 v102, v3, 4, v2")
            a.e("v_min_u32 v3, 1, v3"); a.e("v_lshl_add_u32 v107, v3, 4, v2"); a.e("v_add_u32 v107, 128, v107")
            a.e(f"s_add_u32 s11, s101, {16*1280}")
            for rs_ in range(2):
                for i in range(3):
                    a.e(f"buffer_load_dwordx4 {vr(CSD+4*(3*rs_+i),4)}, v{102 if i < 2 else 107}, {sr(S_WB,4)}, s{101 if rs_ == 0 else 11} offen offset:{64 if i == 1 else 0}")
            vm.issue('side', 6)
        srd(a, S_3, P_DBG, P_DBG + 1, 0, 256)
        a.e("v_mov_b32 v101, 0")
        vm.wait(('st', 0))
        a.e("s_barrier")
        stamp_at(1)
        a.e("s_lshl_b32 s80, s2, 2"); a.e("s_add_u32 s80, s80, s14")
        a.e("s_cmp_lg_u32 s80, 0")
        a.e(f"s_cbranch_scc1 {L(tg+'_nn')}")
        a.e("s_memrealtime s[82:83]")
        a.e("s_waitcnt lgkmcnt(0)")
        a.e("s_or_b32 s82, s82, 1")
        a.e("v_mov_b32 v2, s82")
        a.e("s_mov_b64 exec, 1")
        a.e(f"buffer_store_dword v2, v101, {sr(S_3,4)}, 0 offen sc1")
        a.e("s_mov_b64 exec, -1")
        a.e("s_waitcnt vmcnt(0)")
        a.lab(L(tg + '_nn'))
        dma(1); dma(2)
        hst(0, 2); vm.wait(('st', 1)); hst(0, 1); a.e("s_barrier")
        w0 = len(a.lines)
        for k in range(10):
            a.e(f"v_lshlrev_b32 v{XU+2*k}, 16, v{RS+k}"); a.e(f"v_and_b32 v{XU+2*k+1}, 0xffff0000, v{RS+k}")
        a.e(f"v_add_f32 v2, v{XU}, v{XU+1}"); a.e(f"v_add_f32 v3, v{XU+2}, v{XU+3}")
        for k in range(4, 20, 2):
            a.e(f"v_add_f32 v2, v2, v{XU+k}"); a.e(f"v_add_f32 v3, v3, v{XU+k+1}")
        a.e("v_add_f32 v2, v2, v3")
        red16(a, [2]); swap_add(a, [2], 4, 16)
        a.e(f"v_mul_f32 v2, {0x3acccccd:#x}, v2")
        for k in range(20): a.e(f"v_sub_f32 v{XU+k}, v{XU+k}, v2")
        a.e(f"v_mul_f32 v3, v{XU}, v{XU}"); a.e(f"v_mul_f32 v4, v{XU+1}, v{XU+1}")
        for k in range(2, 20, 2):
            a.e(f"v_fmac_f32 v3, v{XU+k}, v{XU+k}"); a.e(f"v_fmac_f32 v4, v{XU+k+1}, v{XU+k+1}")
        a.e("v_add_f32 v3, v3, v4")
        red16(a, [3]); swap_add(a, [3], 4, 16)
        a.e(f"v_mul_f32 v3, {0x3acccccd:#x}, v3")
        bf16r(a, 96, 2); bf16r(a, 3, 3)
        a.e(f"v_add_f32 v3, {0x3727c5ac:#x}, v3")
        bf16r(a, 3, 3)
        a.e("v_sqrt_f32 v3, v3"); a.e("s_nop 0")
        bf16r(a, 3, 3)
        a.e("v_rcp_f32 v98, v3")
        weave(3, w0)
        a.e(f"buffer_load_dword v97, v101, {sr(S_3,4)}, 0 offen sc1"); vm.issue('nonce')
        hst(1, 2); vm.wait(('st', 2)); hst(1, 1); a.e("s_barrier")
        def colsum_mfma():
            if glu:
                a.e("v_and_b32 v2, 15, v1")
                for q in range(4):
                    a.e(f"v_cmp_eq_u32 vcc, {2*q}, v2"); a.e("v_mov_b32 v3, 0x3f80"); a.e("s_nop 0"); a.e(f"v_cndmask_b32 v{88+q}, 0, v3, vcc")
                    a.e(f"v_cmp_eq_u32 vcc, {2*q+1}, v2"); a.e("v_mov_b32 v3, 0x3f800000"); a.e("s_nop 0"); a.e(f"v_cndmask_b32 v{88+q}, v{88+q}, v3, vcc")
                a.e("s_nop 1")
                for i in range(10):
                    a.e(f"v_mfma_f32_16x16x32_bf16 {vr(CA,4)}, v[88:91], {vr(CSD+4*i,4)}, {'0' if i == 0 else vr(CA,4)}")
            else:
                a.e("v_mov_b32 v3, 0x3f803f80")
                a.e("v_cmp_gt_u32 vcc, 32, v1"); a.e("s_nop 1")
                for q in range(4):
                    a.e(f"v_mov_b32 v{88+q}, v3"); a.e(f"v_cndmask_b32 v{92+q}, 0, v3, vcc")
                a.e("s_nop 1")
                for rs_ in range(2):
                    for i in range(3):
                        a.e(f"v_mfma_f32_16x16x32_bf16 {vr(CA+4*rs_,4)}, {vr(88 if i < 2 else 92,4)}, {vr(CSD+4*(3*rs_+i),4)}, {'0' if i == 0 else vr(CA+4*rs_,4)}")
        w0 = len(a.lines); colsum_mfma(); weave(4, w0)
        hst(2, 2); vm.wait(('st', 3)); hst(2, 1); a.e("s_barrier")
        srd(a, S_3, P_DBG, P_DBG + 1, 0, 256)
        a.e("s_mov_b32 s80, 0")
        a.lab(L(tg + '_np'))
        a.e(f"v_readfirstlane_b32 s{NONCE}, v97")
        a.e("s_nop 3")
        a.e(f"s_cmp_lg_u32 s{NONCE}, 0")
        a.e(f"s_cbranch_scc1 {L(tg+'_np_ok')}")
        a.e("s_add_u32 s80, s80, 1"); a.e(f"s_cmp_lt_u32 s80, {SPIN:#x}")
        a.e(f"s_cbranch_scc0 {L(tg+'_np_ok')}")
        a.e(f"buffer_load_dword v97, v101, {sr(S_3,4)}, 0 offen sc1")
        a.e("s_waitcnt vmcnt(0)")
        a.e(f"s_branch {L(tg+'_np')}")
        a.lab(L(tg + '_np_ok'))
        a.e(f"v_mov_b32 v2, {T_NONCE:#x}"); a.e("ds_write_b32 v2, v97")
        a.e("v_mov_b32 v99, v97")
        a.e("v_lshlrev_b32 v3, 4, v100")
        a.e("s_mov_b32 exec_lo, 1"); a.e("s_mov_b32 exec_hi, 1")
        a.e(f"buffer_store_dwordx4 v[96:99], v3, {sr(S_SY,4)}, 0 offen sc1")
        a.e("s_mov_b64 exec, -1")
        if glu:
            a.e("s_lshl_b32 s80, s7, 4"); a.e("s_lshl_b32 s81, s6, 1"); a.e("s_add_u32 s80, s80, s81"); a.e("s_and_b32 s81, s14, 1"); a.e("s_add_u32 s80, s80, s81")
            a.e("s_mul_i32 s80, s80, 1280"); a.e("s_lshr_b32 s81, s14, 1"); a.e("s_mul_i32 s81, s81, 640"); a.e("s_add_u32 s80, s80, s81")
            a.e(f"s_add_u32 s80, s80, {CP_O:#x}")
            a.e("v_and_b32 v3, 15, v1"); a.e("v_lshlrev_b32 v3, 6, v3"); a.e("v_lshrrev_b32 v4, 4, v1"); a.e("v_lshl_add_u32 v3, v4, 5, v3")
            for q in range(2):
                a.e(f"v_mov_b32 v{XU+4*q}, v{CA+2*q}"); a.e(f"v_mov_b32 v{XU+4*q+1}, v97")
                a.e(f"v_mov_b32 v{XU+4*q+2}, v{CA+2*q+1}"); a.e(f"v_mov_b32 v{XU+4*q+3}, v97")
            a.e("s_mov_b64 exec, 0x03ff03ff")
            for q in range(2):
                a.e(f"buffer_store_dwordx4 {vr(XU+4*q,4)}, v3, {sr(S_SY,4)}, s80 offen offset:{16*q} sc1")
            a.e("s_mov_b64 exec, -1")
        else:
            a.e("s_lshl_b32 s80, s7, 4"); a.e("s_lshl_b32 s81, s6, 1"); a.e("s_add_u32 s80, s80, s81")
            a.e("s_mul_i32 s80, s80, 1280"); a.e("s_lshl_b32 s81, s14, 8"); a.e("s_add_u32 s80, s80, s81")
            a.e(f"s_add_u32 s80, s80, {CP_O:#x}")
            a.e("v_lshlrev_b32 v3, 3, v1")
            a.e(f"v_mov_b32 v{CA+1}, v97"); a.e(f"v_mov_b32 v{CA+5}, v97")
            a.e("s_mov_b64 exec, 0xffff")
            a.e(f"buffer_store_dwordx2 {vr(CA,2)}, v3, {sr(S_SY,4)}, s80 offen sc1")
            a.e(f"buffer_store_dwordx2 {vr(CA+4,2)}, v3, {sr(S_SY,4)}, s80 offen offset:128 sc1")
            a.e("s_mov_b64 exec, -1")
        vm.issue('pub', 3)
        dma(5)
        hst(3, 2); vm.wait(('st', 4)); hst(3, 1); a.e("s_barrier")
        if wpf == 1:
            a.e("s_and_b32 s80, s3, 1"); a.e("s_lshl_b32 s80, s80, 2"); a.e("s_and_b32 s81, s4, 3"); a.e("s_add_u32 s80, s80, s81")
            a.e("s_lshr_b32 s81, s4, 2"); a.e("s_lshl_b32 s81, s81, 2"); a.e("s_add_u32 s81, s81, s14")
            srd(a, S_1, P_WD, P_WD + 1, 0, 1728 * 1280)
            a.e("v_and_b32 v2, 31, v1"); a.e("s_mul_i32 s82, s81, 54"); a.e("v_add_u32 v2, s82, v2"); a.e("v_mul_u32_u24 v2, 1280, v2")
            a.e("v_lshrrev_b32 v3, 5, v1"); a.e("v_lshl_add_u32 v40, v3, 7, v2"); a.e("s_mul_i32 s8, s80, 160"); a.e(f"s_add_u32 s9, s8, {22*1280}")
            a.e("v_min_u32 v2, 49, v1"); a.e("s_mul_i32 s82, s81, 50"); a.e("v_add_u32 v2, s82, v2"); a.e("s_mov_b32 s82, 0xcccccccd")
            a.e("v_mul_hi_u32 v3, v2, s82"); a.e("v_lshrrev_b32 v3, 3, v3"); a.e("v_mul_u32_u24 v4, 10, v3"); a.e("v_sub_u32 v4, v2, v4")
            a.e("s_cmp_lt_u32 s81, 16")
            a.e(f"s_cselect_b32 s{S_2}, s{P_CRE}, s{P_CIM}"); a.e(f"s_cselect_b32 s{S_2+1}, s{P_CRE+1}, s{P_CIM+1}")
            a.e(f"s_mov_b32 s{S_2+2}, {640*1280:#x}"); a.e(f"s_mov_b32 s{S_2+3}, 0x00020000")
            a.e("s_cselect_b32 s82, 0, 80"); a.e("v_subrev_u32 v3, s82, v3")
            a.e("v_mul_u32_u24 v3, 1280, v3"); a.e("v_lshl_add_u32 v41, v4, 7, v3"); a.e(f"s_mul_i32 s10, s80, {80*1280}")
        if wpf == 2:
            a.e("s_lshl_b32 s81, s2, 2"); a.e("s_add_u32 s81, s81, s14")
            a.e("s_sub_u32 s82, s81, 576"); a.e("s_sub_u32 s83, s81, 790")
            a.e("s_cmp_lt_u32 s81, 790")
            a.e(f"s_cselect_b32 s{S_2}, s{P_CRE}, s{P_CIM}"); a.e(f"s_cselect_b32 s{S_2+1}, s{P_CRE+1}, s{P_CIM+1}"); a.e("s_cselect_b32 s82, s82, s83")
            a.e(f"s_mov_b32 s{S_2+2}, {640*1280:#x}")
            a.e("s_cmp_lt_u32 s81, 576")
            a.e(f"s_cselect_b32 s{S_2}, s{P_WD}, s{S_2}"); a.e(f"s_cselect_b32 s{S_2+1}, s{P_WD+1}, s{S_2+1}"); a.e("s_cselect_b32 s82, s81, s82")
            a.e(f"s_cselect_b32 s{S_2+2}, {1728*1280:#x}, s{S_2+2}"); a.e(f"s_mov_b32 s{S_2+3}, 0x00020000")
            a.e(f"s_mul_i32 s10, s82, {30*128}"); a.e("v_min_u32 v2, 29, v1"); a.e("v_lshlrev_b32 v41, 7, v2")
        dma(6)
        if wpf == 1: a.e(f"buffer_load_dword v42, v40, {sr(S_1,4)}, s8 offen"); vm.issue('t')
        if wpf == 2: a.e(f"buffer_load_dword v44, v41, {sr(S_2,4)}, s10 offen"); vm.issue('t')
        hst(4, 2); vm.wait(('st', 5)); hst(4, 1); a.e("s_barrier")
        dma(7)
        if wpf == 1: a.e(f"buffer_load_dword v43, v40, {sr(S_1,4)}, s9 offen"); vm.issue('t')
        hst(5, 2); vm.wait(('st', 6)); hst(5, 1); a.e("s_barrier")
        dma(8)
        if wpf == 1: a.e(f"buffer_load_dword v44, v41, {sr(S_2,4)}, s10 offen"); vm.issue('t')
        vm.wait(('st', 7)); a.e("s_barrier")
        dma(9)
        a.e("s_lshl_b32 s80, s6, 8"); a.e("s_lshl_b32 s81, s14, 6"); a.e("s_add_u32 s80, s80, s81")
        a.e("v_add_u32 v4, s80, v1"); a.e("v_lshlrev_b32 v4, 4, v4")
        NP = 16 if glu else 8
        pstr = 1280 if glu else 2560
        a.e(f"s_mul_i32 s9, s7, {16*1280}"); a.e(f"s_add_u32 s9, s9, {CP_O:#x}")
        if glu:
            a.e("s_mul_i32 s81, s14, 40"); a.e("v_min_u32 v5, 39, v1"); a.e("v_add_u32 v5, s81, v5")
        else:
            a.e("s_lshl_b32 s81, s14, 5"); a.e("v_and_b32 v5, 31, v1"); a.e("v_add_u32 v5, s81, v5")
        a.e("v_lshlrev_b32 v6, 3, v5")
        def gather():
            a.e(f"buffer_load_dwordx4 v[8:11], v4, {sr(S_SY,4)}, 0 offen sc1")
            for p in range(NP):
                a.e(f"s_add_u32 s81, s9, {p*pstr}")
                a.e(f"buffer_load_dwordx2 {vr(12+2*p,2)}, v6, {sr(S_SY,4)}, s81 offen sc1")
        gather(); vm.issue('g', NP + 1)
        hst(7, 2); vm.wait(('st', 8)); hst(7, 1); a.e("s_barrier")
        stamp_at(2)
        a.e("s_mov_b32 s80, 0")
        a.lab(L(tg + '_gp'))
        a.e("s_waitcnt vmcnt(0)")
        a.e(f"v_xor_b32 v2, s{NONCE}, v9"); a.e(f"v_xor_b32 v3, s{NONCE}, v11"); a.e("v_or_b32 v2, v2, v3")
        for p in range(NP):
            a.e(f"v_xor_b32 v3, s{NONCE}, v{13+2*p}"); a.e("v_or_b32 v2, v2, v3")
        a.e("v_cmp_ne_u32 vcc, 0, v2")
        a.e("s_cmp_eq_u64 vcc, 0")
        a.e(f"s_cbranch_scc1 {L(tg+'_gp_ok')}")
        a.e("s_add_u32 s80, s80, 1"); a.e(f"s_cmp_lt_u32 s80, {SPIN:#x}")
        a.e(f"s_cbranch_scc0 {L(tg+'_gp_ok')}")
        a.e("s_sleep 2")
        gather()
        a.e(f"s_branch {L(tg+'_gp')}")
        a.lab(L(tg + '_gp_ok'))
        vm.q = []
        k2map()
        for p in range(1, NP): a.e(f"v_add_f32 v12, v12, v{12+2*p}")
        a.e("v_lshlrev_b32 v5, 2, v5"); a.e(f"v_add_u32 v5, {T_CS:#x}, v5")
        a.e("ds_write_b32 v5, v12")
        a.e("s_lshl_b32 s81, s14, 6")
        if glu:
            a.e("v_add_u32 v5, s81, v1"); a.e("v_lshlrev_b32 v5, 3, v5"); a.e(f"v_add_u32 v5, {T_STAT:#x}, v5")
            a.e("v_mov_b32 v9, v10")
            a.e("ds_write_b64 v5, v[8:9]")
        else:
            a.e("v_and_b32 v5, 32, v1"); a.e("v_bfe_u32 v6, v1, 3, 1"); a.e("v_lshl_or_b32 v5, v6, 4, v5")
            a.e("v_and_b32 v6, 7, v1"); a.e("v_lshl_or_b32 v5, v6, 1, v5"); a.e("v_bfe_u32 v6, v1, 4, 1"); a.e("v_or_b32 v5, v5, v6")
            a.e("v_add_u32 v5, s81, v5"); a.e("v_lshlrev_b32 v5, 2, v5"); a.e(f"v_add_u32 v5, {T_STAT:#x}, v5")
            a.e("ds_write_b32 v5, v8"); a.e("ds_write_b32 v5, v10 offset:1024")
        a.e("s_waitcnt lgkmcnt(0)")
        a.e("s_barrier")
        S_WD, S_CR, S_CI = S_1, S_2, S_WB
        srd(a, S_WD, P_WD, P_WD + 1, 0, 1728 * 1280)
        srd(a, S_CR, P_CRE, P_CRE + 1, 0, 640 * 1280)
        srd(a, S_CI, P_CIM, P_CIM + 1, 0, 640 * 1280)
        a.e("s_mov_b32 s81, 0xcccccccd")
        for jj in range(5):
            a.e(f"v_add_u32 v2, {64*jj}, v1"); a.e("v_mul_hi_u32 v3, v2, s81"); a.e("v_lshrrev_b32 v3, 3, v3")
            a.e("v_mul_u32_u24 v6, 10, v3"); a.e("v_sub_u32 v6, v2, v6"); a.e("v_mul_u32_u24 v3, 1280, v3")
            a.e(f"v_lshl_add_u32 v{8+jj}, v6, 4, v3")
            if jj & 3: a.e(f"v_subrev_u32 v{8+jj}, {(jj&3)*1024}, v{8+jj}")
        a.e("v_lshrrev_b32 v2, 3, v1"); a.e("v_and_b32 v3, 7, v1"); a.e("v_xor_b32 v3, v3, v2")
        a.e("s_and_b32 s80, s14, 1"); a.e("s_mul_i32 s80, s80, 40"); a.e("v_add_u32 v2, s80, v2"); a.e("v_mul_u32_u24 v2, 1280, v2")
        a.e("v_lshl_add_u32 v2, v3, 4, v2")
        for jj in range(5): a.e(f"v_add_u32 v{16+jj}, {jj*10240 - (jj&3)*1024}, v2")
        a.e("s_mul_i32 s7, s13, 160")
        k2rot(0); a.e("s_add_u32 s0, s0, s14"); a.e("s_sub_u32 s80, s0, 54"); a.e("s_cmp_ge_u32 s0, 54"); a.e("s_cselect_b32 s0, s80, s0")
        def wd_soff():
            a.e(f"s_mul_i32 s82, s0, {32*1280}"); a.e("s_add_u32 s82, s82, s7")
            a.e("s_add_u32 s0, s0, 4"); a.e("s_sub_u32 s80, s0, 54"); a.e("s_cmp_ge_u32 s0, 54"); a.e("s_cselect_b32 s0, s80, s0")
        a.e(f"s_mul_i32 s8, s13, {80*1280}"); a.e("s_lshr_b32 s80, s14, 1"); a.e("s_lshl_b32 s80, s80, 7"); a.e("s_add_u32 s8, s8, s80")
        a.e("s_mul_i32 s6, s14, 5120")
        def five(vb, S, soff_s, base):
            a.e(f"s_add_u32 m0, s6, {base}"); a.e("s_nop 0")
            for j in range(5):
                if j == 4: a.e(f"s_add_u32 m0, s6, {base+4096}"); a.e("s_nop 0")
                a.e(f"buffer_load_dwordx4 v{vb+j}, {sr(S,4)}, {soff_s} offen offset:{(j&3)*1024} lds")
        def issue(s_):
            base = ((s_ + SLOT0) % RING) * SPS * 5120
            if s_ < 13:
                wd_soff(); five(8, S_WD, "s82", base)
            elif s_ == 13:
                a.e("s_cmp_ge_u32 s14, 2"); a.e(f"s_cbranch_scc1 {L(tg+'_m13')}")
                wd_soff(); five(8, S_WD, "s82", base)
                a.e(f"s_branch {L(tg+'_m13e')}")
                a.lab(L(tg + '_m13'))
                a.e("s_sub_u32 s82, s8, 128"); five(16, S_CR, "s82", base)
                a.lab(L(tg + '_m13e'))
            else:
                p0 = 2 * (s_ - 14) + 1
                if p0 + 1 < 10 or p0 >= 10:
                    skip = None
                    if p0 + 1 >= 20:
                        skip = L(tg + '_sk23'); a.e("s_cmp_ge_u32 s14, 2"); a.e(f"s_cbranch_scc1 {skip}")
                    a.e(f"s_add_u32 s82, s8, {(p0 % 10)*128}"); five(16, S_CR if p0 < 10 else S_CI, "s82", base)
                    if skip: a.lab(skip)
                else:
                    a.e("s_cmp_ge_u32 s14, 2"); a.e(f"s_cbranch_scc1 {L(tg+'_m18')}")
                    a.e(f"s_add_u32 s82, s8, {9*128}"); five(16, S_CR, "s82", base)
                    a.e(f"s_branch {L(tg+'_m18e')}")
                    a.lab(L(tg + '_m18'))
                    a.e("s_sub_u32 s82, s8, 128"); five(16, S_CI, "s82", base)
                    a.lab(L(tg + '_m18e'))
            vm.issue(('s', s_), 5)
        issue(0); issue(1)
        stamp_at(3)
        a.e("s_barrier")
        if not glu:
            a.e("s_barrier"); a.e("s_barrier"); a.e("s_barrier")
        elif dly: a.e("s_barrier")
        for s in range(2, RING): issue(s)
        stamp_at(4)
        for s in range(NSTG):
            if s == NSTG - 1: vm.wait_all()
            else: vm.wait(('s', s))
            a.e("s_barrier")
            if s >= 2 and s + RING - 2 < NSTG and not (x2 & 2): issue(s + RING - 2)
        stamp_at(7)
        stamp_out(0, 8)
        a.e("s_endpgm")
    a.lab(L('hglu')); a.c("================ helper GLU"); helper(True)
    a.lab(L('hssm')); a.c("================ helper SSM"); helper(False)
    a.lab(done)
    a.e("s_endpgm")
    return kernel_desc(name, 256, 102, 256)

def build(fn, **kw):
    a = Asm()
    hdr = open("parallel_sum__ssm_conv_s5__glu_gated_bilinear__prompt.s.ref").read().split("\n")
    for l in hdr:
        if l.startswith(";") and "@launch" not in l and "Override" not in l and "grid=ceil" not in l: a.raw(l)
    single = kw.pop("single", 0)
    name = "parallel_sum__ssm_conv_s5__glu_gated_bilinear__prompt_kernel"
    if single: a.raw(f"; @launch grid=(256,1,1) block=(512,1,1) lds={LDS_BYTES}")
    else: a.raw(f"; @launch kernel={name} grid=(256,1,1) block=(512,1,1) lds={LDS_BYTES}")
    a.raw('.amdgcn_target "amdgcn-amd-amdhsa--gfx950"\n.text')
    of = {0: "", 1: "sc1", 2: "nt"}[kw.pop("of", 0)]
    d = gen(a, name, outflag=of, **kw)
    a.raw('.section .rodata,"a"\n.p2align 6')
    a.raw(d)
    open(fn, "w").write(a.text())
if __name__ == "__main__":
    kw = {k: int(v) for k, v in (kv.split("=") for kv in sys.argv[2:])}
    build(sys.argv[1], **kw)
```

```python
from asmlib import *
import sys
TS = 94 * 1024
A2_OFF = 0;            A2_BYTES = 128 * TS
W2_OFF = 16 << 20;     W2_BYTES = 40 * TS
SY_OFF = 24 << 20
SG_O = 0
CP_O = 0x10000
LB_O = 0xC0000
FA_O = 0xE0000
FW_O = 0xE8000
SY_BYTES = 0xF0000
STAMP_OFF = 32 << 20
SB = 53376
G_OFF = 32768; U_OFF = 43136; BRE_OFF = 32768
TAB = 3 * SB
T_STAT = TAB; T_CS = TAB + 2048; T_NONCE = TAB + 2048 + 640
LDS_BYTES = TAB + 2048 + 640 + 64
NST = 10
T_AB = 92160
INV2PI = 0x3e22f983; LOG2E = 0x3fb8aa3b
KS = list(range(40, 94)) + list(range(0, 40))
SPS = 4; NSTG = 24; RING = 7; SLOT0 = 5
SPIN = 0x20000

class Cnt:
    def __init__(self, a, name, maxv):
        self.a, self.name, self.maxv, self.q = a, name, maxv, []
    def issue(self, tag, n=1):
        self.q += [tag] * n
    def wait(self, tag):
        idx = [i for i, t in enumerate(self.q) if t == tag or (isinstance(t, frozenset) and tag in t)]
        if not idx: return
        n = min(len(self.q) - 1 - idx[-1], self.maxv)
        self.a.e(f"s_waitcnt {self.name}({n})")
        self.q = self.q[len(self.q) - n:] if n else []
    def wait_all(self):
        self.a.e(f"s_waitcnt {self.name}(0)"); self.q = []

def bf16r(a, dst, src):
    a.e(f"v_cvt_pk_bf16_f32 v{dst}, v{src}, v{src}")
    a.e(f"v_lshlrev_b32 v{dst}, 16, v{dst}")

def gen_abar(a, vLre, vLim, vldt, oa, t):
    a.e(f"v_lshlrev_b32 v{vLre}, 16, v{vLre}")
    a.e(f"v_lshlrev_b32 v{vLim}, 16, v{vLim}")
    a.e(f"v_lshlrev_b32 v{vldt}, 16, v{vldt}")
    a.e(f"v_mul_f32 v{t}, {LOG2E:#x}, v{vldt}")
    a.e(f"v_exp_f32 v{t}, v{t}")
    a.e("s_nop 0")
    bf16r(a, t, t)
    a.e(f"v_mul_f32 v{t+1}, v{t}, v{vLre}")
    a.e(f"v_mul_f32 v{t+2}, v{t}, v{vLim}")
    a.e(f"v_mul_f32 v{t+1}, {LOG2E:#x}, v{t+1}")
    a.e(f"v_exp_f32 v{t+1}, v{t+1}")
    a.e(f"v_mul_f32 v{t+2}, {INV2PI:#x}, v{t+2}")
    a.e(f"v_fract_f32 v{t+2}, v{t+2}")
    a.e(f"v_cos_f32 v{t+3}, v{t+2}")
    a.e(f"v_sin_f32 v{t+2}, v{t+2}")
    a.e("s_nop 0")
    a.e(f"v_mul_f32 v{oa}, v{t+1}, v{t+3}")
    a.e(f"v_mul_f32 v{oa+1}, v{t+1}, v{t+2}")

def csq(a, d, s, t):
    a.e(f"v_mul_f32 v{t}, v{s+1}, v{s+1}")
    a.e(f"v_mul_f32 v{t+1}, v{s}, v{s+1}")
    a.e(f"v_fma_f32 v{d}, v{s}, v{s}, -v{t}")
    a.e(f"v_add_f32 v{d+1}, v{t+1}, v{t+1}")

DPP = "row_mask:0xf bank_mask:0xf"
def red16(a, regs):
    for sh in (8, 4, 2, 1):
        a.e("s_nop 1")
        for r in regs: a.e(f"v_add_f32 v{r}, v{r}, v{r} row_ror:{sh} {DPP}")
def swap_add(a, regs, tmp, which):
    for i, r in enumerate(regs): a.e(f"v_mov_b32 v{tmp+i}, v{r}")
    a.e("s_nop 1")
    for i, r in enumerate(regs): a.e(f"v_permlane{which}_swap_b32 v{r}, v{tmp+i}")
    a.e("s_nop 1")
    for i, r in enumerate(regs): a.e(f"v_add_f32 v{r}, v{r}, v{tmp+i}")

def gen(a, name, stamp=0, prio=0, AD=8, outflag="", bst=0, nosc=0, clk=0, npre=0, PD=3, pf=0, nc=0, rot=0, wpf=2, dly=1, apf=0, rot2=0, x2=0, cpf=0, scr=0):
    a.raw(f".globl {name}\n.p2align 8\n.type {name},@function")
    a.lab(name)
    done = f"{name}_done"
    L = lambda s: f"{name}_{s}"
    P_X, P_LRE, P_LIM, P_BRE, P_BIM, P_CRE, P_CIM, P_LDT = 16, 18, 20, 22, 24, 26, 28, 30
    P_DSK = 32; P_WG, P_WU, P_WD, P_OUT, P_DBG, P_WS = 36, 38, 40, 42, 44, 46
    S_X, S_WB, S_A2, S_W2, S_SY, S_1, S_2, S_3 = 48, 52, 56, 60, 64, 68, 72, 76
    NONCE = 15
    a.e("s_cmp_ge_u32 s2, 256")
    a.e(f"s_cbranch_scc1 {done}")
    a.e("s_load_dwordx16 s[16:31], s[0:1], 0")
    a.e("s_load_dwordx16 s[32:47], s[0:1], 64")
    if stamp: a.e("s_memrealtime s[84:85]")
    if cpf:
        a.e("s_getpc_b64 s[76:77]")
        a.lab(L('pc0'))
        a.e(f"s_sub_u32 s76, s76, {L('pc0')}-{name}")
        a.e("s_subb_u32 s77, s77, 0")
        a.e(f"s_mov_b32 s78, {done}-{name}")
        a.e("s_mov_b32 s79, 0x00020000")
        a.e("v_lshlrev_b32 v250, 7, v0")
        a.e("buffer_load_dword v251, v250, s[76:79], 0 offen")
        if cpf > 1:
            a.e("v_add_u32 v250, 0x10000, v250")
            a.e("buffer_load_dword v252, v250, s[76:79], 0 offen")
    if scr == 1:
        a.e("s_and_b32 s3, s2, 7"); a.e("s_lshl_b32 s3, s3, 5"); a.e("s_lshr_b32 s4, s2, 3"); a.e("s_or_b32 s2, s3, s4")
    a.e("s_and_b32 s3, s2, 7")
    a.e("s_lshr_b32 s4, s2, 3")
    a.e("s_and_b32 s6, s3, 1"); a.e("s_lshl_b32 s6, s6, 2"); a.e("s_and_b32 s8, s4, 3"); a.e("s_add_u32 s6, s6, s8")
    a.e("s_lshr_b32 s7, s3, 1"); a.e("s_lshl_b32 s7, s7, 3"); a.e("s_lshr_b32 s8, s4, 2"); a.e("s_add_u32 s7, s7, s8")
    a.e("v_lshrrev_b32 v2, 6, v0")
    a.e("v_and_b32 v1, 63, v0")
    a.e("v_readfirstlane_b32 s5, v2")
    a.e("s_sub_u32 s9, s7, 10"); a.e("s_mul_i32 s9, s9, 80"); a.e("s_min_u32 s9, s9, 1648")
    a.e("s_lshr_b32 s10, s9, 4")
    a.e("s_and_b32 s14, s5, 3")
    a.e("v_lshrrev_b32 v2, 3, v1")
    a.e("s_lshl_b32 s11, s14, 6")
    a.e("v_add_u32 v3, s11, v2")
    a.e("v_mul_u32_u24 v3, 1280, v3")
    a.e("v_bfe_u32 v4, v1, 4, 2")
    a.e("v_and_b32 v5, 7, v1")
    a.e("v_xor_b32 v4, v4, v5")
    a.e("v_xor_b32 v5, 4, v4")
    a.e("v_lshl_add_u32 v6, v4, 4, v3")
    a.e("v_lshl_add_u32 v7, v5, 4, v3")
    DA, DB = 232, 240
    for j in range(8):
        a.e(f"v_add_u32 v{DA+j}, {j*10240 - (j&3)*1024}, v{6 if not (j>>1)&1 else 7}")
    a.e(f"s_mul_i32 s12, s6, {256*1280}")
    a.e("s_lshl_b32 s13, s14, 13")
    a.e("s_waitcnt lgkmcnt(0)")
    srd(a, S_X, P_X, P_X + 1, 0, 2048 * 1280)
    if rot == 1: a.e("s_lshr_b32 s0, s4, 2")
    elif rot == 3:
        a.e("s_lshr_b32 s0, s4, 2"); a.e("s_and_b32 s1, s4, 3"); a.e("s_mul_i32 s1, s1, 3"); a.e("s_add_u32 s0, s0, s1")
        a.e("s_sub_u32 s1, s0, 10"); a.e("s_cmp_ge_u32 s0, 10"); a.e("s_cselect_b32 s0, s1, s0")
    elif rot == 2: a.e("s_lshr_b32 s0, s4, 2"); a.e("s_and_b32 s0, s0, 1"); a.e("s_mul_i32 s0, s0, 5")
    else: a.e("s_mov_b32 s0, 0")
    a.e("s_cmp_lt_u32 s5, 4")
    a.e(f"s_cbranch_scc1 {L('nodma0')}")
    a.e("s_lshl_b32 s83, s0, 7"); a.e("s_add_u32 s83, s83, s12")
    a.e("s_mov_b32 m0, s13")
    for j in range(8):
        if j == 4:
            a.e("s_add_u32 m0, s13, 4096"); a.e("s_nop 0")
        a.e(f"buffer_load_dwordx4 v{DA+j}, {sr(S_X,4)}, s83 offen offset:{(j&3)*1024} lds")
    a.lab(L('nodma0'))
    srd(a, S_A2, P_WS, P_WS + 1, A2_OFF, A2_BYTES)
    srd(a, S_W2, P_WS, P_WS + 1, W2_OFF, W2_BYTES)
    srd(a, S_SY, P_WS, P_WS + 1, SY_OFF, SY_BYTES)
    a.e("s_cmp_lt_u32 s7, 10")
    a.e(f"s_cbranch_scc1 {L('ssm_b')}")

    ph = [0]
    def stamp_at(k):
        if stamp and not (bst and ph[0] != 1 and k >= 2): a.e(f"s_memrealtime s[{84+2*k}:{85+2*k}]")
    def stamp_out(phase, vt):
        if not stamp: return
        a.e("s_waitcnt lgkmcnt(0)")
        srd(a, S_3, P_WS, P_WS + 1, STAMP_OFF + phase * (1 << 19), 1 << 19)
        for k in range(8): a.e(f"v_mov_b32 v{vt+k}, s{84+2*k}")
        a.e("s_lshl_b32 s80, s2, 8"); a.e("s_lshl_b32 s81, s5, 5"); a.e("s_add_u32 s80, s80, s81")
        a.e(f"v_mov_b32 v{vt+8}, s80")
        a.e(f"buffer_store_dwordx4 {vr(vt,4)}, v{vt+8}, {sr(S_3,4)}, 0 offen")
        a.e(f"buffer_store_dwordx4 {vr(vt+4,4)}, v{vt+8}, {sr(S_3,4)}, 0 offen offset:16")

    def b_setup(glu):
        a.e("s_and_b32 s80, s14, 1")
        a.e("s_cmp_lt_u32 s14, 2")
        if glu:
            a.e(f"s_cselect_b32 s{S_WB}, s{P_WG}, s{P_WU}")
            a.e(f"s_cselect_b32 s{S_WB+1}, s{P_WG+1}, s{P_WU+1}")
            a.e(f"s_mov_b32 s{S_WB+2}, {640*3456:#x}")
            a.e(f"s_mov_b32 s{S_WB+3}, 0x00020000")
            a.e(f"s_mov_b32 s100, {G_OFF}")
            a.e(f"s_cselect_b32 s100, s100, {U_OFF}")
            a.e("s_mul_i32 s11, s80, 5120")
            a.e("s_add_u32 s100, s100, s11")
            a.e("s_lshl_b32 s101, s9, 1")
            a.e("s_mov_b32 s81, 0xcccccccd")
            a.e("s_mul_i32 s11, s80, 320")
            for jj in range(5):
                a.e(f"v_add_u32 v2, {64*jj}, v1")
                a.e("v_add_u32 v2, s11, v2")
                a.e("v_mul_hi_u32 v3, v2, s81")
                a.e("v_lshrrev_b32 v3, 3, v3")
                a.e("v_mul_u32_u24 v6, 10, v3")
                a.e("v_sub_u32 v6, v2, v6")
                a.e("v_mul_u32_u24 v3, 3456, v3")
                a.e(f"v_lshl_add_u32 v{DB+jj}, v6, 4, v3")
                if jj & 3: a.e(f"v_subrev_u32 v{DB+jj}, {(jj&3)*1024}, v{DB+jj}")
        else:
            a.e(f"s_cselect_b32 s{S_WB}, s{P_BRE}, s{P_BIM}")
            a.e(f"s_cselect_b32 s{S_WB+1}, s{P_BRE+1}, s{P_BIM+1}")
            a.e(f"s_mov_b32 s{S_WB+2}, {640*1280:#x}")
            a.e(f"s_mov_b32 s{S_WB+3}, 0x00020000")
            a.e("s_lshl_b32 s100, s14, 12")
            a.e(f"s_add_u32 s100, s100, {BRE_OFF}")
            a.e(f"s_mul_i32 s101, s7, {64*1280}")
            a.e("v_lshrrev_b32 v2, 3, v1")
            a.e("s_lshl_b32 s11, s80, 5")
            a.e("v_add_u32 v3, s11, v2")
            a.e("v_mul_u32_u24 v3, 1280, v3")
            a.e("v_lshl_add_u32 v6, v4, 4, v3")
            a.e("v_lshl_add_u32 v7, v5, 4, v3")
            for jj in range(4):
                a.e(f"v_add_u32 v{DB+jj}, {jj*10240 - jj*1024}, v{6 if not (jj>>1)&1 else 7}")
        a.e("s_cmp_lt_u32 s5, 4")
        a.e(f"s_cbranch_scc1 {L('cglu' if glu else 'cssm')}")
        a.e(f"s_mul_i32 s83, s0, {64*3456 if glu else 128}"); a.e("s_add_u32 s83, s83, s101")
        a.e("s_mov_b32 m0, s100")
        for jj in range(5 if glu else 4):
            if jj == 4:
                a.e("s_add_u32 m0, s100, 4096"); a.e("s_nop 0")
            a.e(f"buffer_load_dwordx4 v{DB+jj}, {sr(S_WB,4)}, s83 offen offset:{(jj&3)*1024} lds")
        a.e(f"s_branch {L('hglu' if glu else 'hssm')}")

    def side_jobs(glu):
        RS, CSD, XU, CA = 96, 112, 160, 192
        a.e("s_lshl_b32 s80, s6, 8"); a.e("s_lshl_b32 s81, s7, 3"); a.e("s_add_u32 s80, s80, s81"); a.e("s_lshl_b32 s81, s14, 1"); a.e("s_add_u32 s80, s80, s81")
        a.e("v_lshrrev_b32 v2, 5, v1"); a.e("v_add_u32 v3, s80, v2")
        a.e("v_mul_u32_u24 v2, 1280, v3"); a.e("v_and_b32 v3, 31, v1"); a.e("v_lshl_add_u32 v2, v3, 3, v2")
        for i in range(5):
            a.e(f"buffer_load_dwordx2 {vr(RS+2*i,2)}, v2, {sr(S_X,4)}, 0 offen offset:{256*i}")
        if glu:
            a.e("s_mul_i32 s80, s6, 80"); a.e("s_and_b32 s81, s14, 1"); a.e("s_mul_i32 s81, s81, 40"); a.e("s_add_u32 s80, s80, s81")
            a.e("v_lshrrev_b32 v2, 4, v1"); a.e("v_add_u32 v2, s80, v2"); a.e("v_mul_u32_u24 v2, 3456, v2")
            a.e("v_and_b32 v3, 15, v1"); a.e("v_min_u32 v3, 9, v3"); a.e("v_lshl_add_u32 v2, v3, 4, v2")
            for i in range(10):
                a.e(f"s_add_u32 s83, s101, {4*i*3456}")
                a.e(f"buffer_load_dwordx4 {vr(CSD+4*i,4)}, v2, {sr(S_WB,4)}, s83 offen")
            ncs = 10
        else:
            a.e("s_and_b32 s81, s14, 1"); a.e("s_lshl_b32 s81, s81, 5")
            a.e("v_and_b32 v2, 31, v1"); a.e("v_add_u32 v2, s81, v2"); a.e("v_mul_u32_u24 v2, 1280, v2")
            a.e("v_lshrrev_b32 v3, 5, v1"); a.e("v_mul_u32_u24 v3, 80, v3"); a.e("v_add_u32 v2, v2, v3")
            a.e("s_mul_i32 s80, s6, 160"); a.e("v_add_u32 v2, s80, v2")
            for i in range(5):
                a.e(f"buffer_load_dwordx4 {vr(CSD+4*i,4)}, v2, {sr(S_WB,4)}, s101 offen offset:{16*i}")
            ncs = 5
        return RS, CSD, XU, CA, ncs
    def side_compute(glu, RS, CSD, XU, CA, younger):
        a.e(f"s_waitcnt vmcnt({younger[0]})")
        for k in range(10):
            a.e(f"v_lshlrev_b32 v{XU+2*k}, 16, v{RS+k}"); a.e(f"v_and_b32 v{XU+2*k+1}, 0xffff0000, v{RS+k}")
        a.e(f"v_add_f32 v2, v{XU}, v{XU+1}"); a.e(f"v_add_f32 v3, v{XU+2}, v{XU+3}")
        for k in range(4, 20, 2):
            a.e(f"v_add_f32 v2, v2, v{XU+k}"); a.e(f"v_add_f32 v3, v3, v{XU+k+1}")
        a.e("v_add_f32 v2, v2, v3")
        red16(a, [2]); swap_add(a, [2], 4, 16)
        a.e(f"v_mul_f32 v2, {0x3acccccd:#x}, v2")
        for k in range(20): a.e(f"v_sub_f32 v{XU+k}, v{XU+k}, v2")
        a.e(f"v_mul_f32 v3, v{XU}, v{XU}"); a.e(f"v_mul_f32 v4, v{XU+1}, v{XU+1}")
        for k in range(2, 20, 2):
            a.e(f"v_fmac_f32 v3, v{XU+k}, v{XU+k}"); a.e(f"v_fmac_f32 v4, v{XU+k+1}, v{XU+k+1}")
        a.e("v_add_f32 v3, v3, v4")
        red16(a, [3]); swap_add(a, [3], 4, 16)
        a.e(f"v_mul_f32 v3, {0x3acccccd:#x}, v3")
        bf16r(a, 2, 2); bf16r(a, 3, 3)
        a.e(f"v_add_f32 v3, {0x3727c5ac:#x}, v3")
        bf16r(a, 3, 3)
        a.e("v_sqrt_f32 v3, v3"); a.e("s_nop 0")
        bf16r(a, 3, 3)
        a.e("v_rcp_f32 v3, v3")
        a.e("v_lshrrev_b32 v4, 5, v1"); a.e("s_lshl_b32 s80, s14, 4"); a.e(f"s_add_u32 s80, s80, {T_STAT+1536:#x}")
        a.e("v_lshl_add_u32 v4, v4, 3, s80")
        a.e("ds_write_b64 v4, v[2:3]")
        a.e(f"v_mov_b32 v5, 0x00003f80"); a.e("v_mov_b32 v6, 0x3f800000"); a.e("v_mov_b32 v7, 0x3f803f80")
        a.e(f"s_waitcnt vmcnt({younger[1]})")
        if glu:
            for i in range(10):
                for r in range(4):
                    d = CSD + 4 * i + r
                    a.e(f"v_dot2_f32_bf16 v{CA+2*r}, v{d}, v5, {'0' if i == 0 else f'v{CA+2*r}'}")
                    a.e(f"v_dot2_f32_bf16 v{CA+2*r+1}, v{d}, v6, {'0' if i == 0 else f'v{CA+2*r+1}'}")
            a.e("s_nop 2")
            regs = list(range(CA, CA + 8))
            swap_add(a, regs, XU, 16); swap_add(a, regs, XU, 32)
            a.e("v_and_b32 v4, 15, v1"); a.e("v_min_u32 v4, 9, v4"); a.e("s_mul_i32 s80, s14, 320"); a.e(f"s_add_u32 s80, s80, {T_STAT:#x}")
            a.e("v_lshl_add_u32 v4, v4, 5, s80")
            a.e(f"ds_write_b128 v4, {vr(CA,4)}"); a.e(f"ds_write_b128 v4, {vr(CA+4,4)} offset:16")
        else:
            for k in range(20):
                a.e(f"v_dot2_f32_bf16 v{CA+(k&3)}, v{CSD+k}, v7, {'0' if k < 4 else f'v{CA+(k&3)}'}")
            a.e("s_nop 2")
            a.e(f"v_add_f32 v{CA}, v{CA}, v{CA+1}"); a.e(f"v_add_f32 v{CA+2}, v{CA+2}, v{CA+3}"); a.e(f"v_add_f32 v{CA}, v{CA}, v{CA+2}")
            swap_add(a, [CA], XU, 32)
            a.e("v_and_b32 v4, 31, v1"); a.e("s_lshl_b32 s80, s14, 7"); a.e(f"s_add_u32 s80, s80, {T_STAT:#x}")
            a.e("v_lshl_add_u32 v4, v4, 2, s80")
            a.e(f"ds_write_b32 v4, v{CA}")
        a.e("s_waitcnt lgkmcnt(0)")

    def l2_prefetch(glu):
        if not pf: return
        a.e("s_lshr_b32 s80, s4, 2"); a.e("s_lshl_b32 s80, s80, 5"); a.e("s_lshl_b32 s81, s6, 8"); a.e("s_add_u32 s80, s80, s81")
        a.e("v_and_b32 v2, 31, v1"); a.e("v_lshrrev_b32 v3, 5, v1")
        a.e("v_add_u32 v4, s80, v2"); a.e("v_mul_u32_u24 v4, 1280, v4"); a.e("v_lshl_add_u32 v4, v3, 7, v4")
        a.e("s_lshl_b32 s80, s5, 8"); a.e("s_add_u32 s80, s80, 256")
        a.e("s_and_b32 s81, s4, 3"); a.e("s_lshl_b32 s81, s81, 4")
        if glu:
            a.e("v_bfe_u32 v5, v1, 4, 1"); a.e("v_lshlrev_b32 v5, 6, v5"); a.e("v_and_b32 v6, 15, v1"); a.e("v_add3_u32 v5, v5, v6, s81")
            a.e("v_mul_u32_u24 v5, 3456, v5"); a.e("v_lshl_add_u32 v5, v3, 7, v5")
            a.e("s_and_b32 s82, s5, 1"); a.e(f"s_mul_i32 s82, s82, {128*3456}"); a.e("s_add_u32 s82, s82, s101")
            a.e(f"s_add_u32 s82, s82, {128*3456}"); a.e(f"s_add_u32 s83, s82, {256*3456}")
            a.e(f"buffer_load_dword v26, v5, {sr(S_WB,4)}, s82 offen")
            a.e(f"buffer_load_dword v27, v4, {sr(S_X,4)}, s80 offen")
            a.e(f"buffer_load_dword v28, v5, {sr(S_WB,4)}, s83 offen")
        else:
            a.e("v_and_b32 v5, 15, v1"); a.e("v_add_u32 v5, s81, v5"); a.e("v_mul_u32_u24 v5, 1280, v5")
            a.e("v_lshrrev_b32 v6, 4, v1"); a.e("v_lshl_add_u32 v5, v6, 7, v5")
            a.e("s_and_b32 s82, s5, 1"); a.e("s_lshl_b32 s82, s82, 9"); a.e("s_add_u32 s82, s82, s101"); a.e("s_add_u32 s82, s82, 256")
            a.e(f"buffer_load_dword v28, v5, {sr(S_WB,4)}, s82 offen")
            a.e(f"buffer_load_dword v29, v4, {sr(S_X,4)}, s80 offen")

    def frag_addrs(dst, vrow, base_add, three=False):
        a.e(f"v_bfe_u32 v4, v{vrow}, 1, 2")
        a.e(f"v_bfe_u32 v5, v{vrow}, 4, 1")
        a.e("v_lshl_or_b32 v4, v5, 2, v4")
        a.e("v_xor_b32 v4, v4, v2")
        a.e(f"v_lshlrev_b32 v5, 7, v{vrow}")
        if base_add: a.e(f"v_add_u32 v5, {base_add}, v5")
        for kk in range(4):
            a.e(f"v_xor_b32 v6, {2*kk}, v4")
            a.e(f"v_lshl_add_u32 v{dst+kk}, v6, 4, v5")
            if three:
                a.e(f"v_add_u32 v{dst+4+kk}, {SB:#x}, v{dst+kk}")
                a.e(f"v_add_u32 v{dst+8+kk}, {2*SB:#x}, v{dst+kk}")
            else:
                a.e(f"v_add_u32 v{dst+4+kk}, {2*SB:#x}, v{dst+kk}")

    def nonce_issue(tag):
        a.e("s_cmp_lg_u32 s5, 0")
        a.e(f"s_cbranch_scc1 {L(tag+'_nn')}")
        srd(a, S_3, P_DBG, P_DBG + 1, 0, 256)
        a.e("s_memrealtime s[82:83]")
        a.e("s_waitcnt lgkmcnt(0)")
        a.e(f"s_or_b32 s{NONCE}, s82, 1")
        a.e(f"v_mov_b32 v30, s{NONCE}")
        a.e("v_mov_b32 v31, 0")
        a.e("v_mov_b32 v29, 0")
        a.e("s_mov_b64 exec, 1")
        a.e(f"buffer_atomic_cmpswap v[30:31], v29, {sr(S_3,4)}, 0 offen sc0")
        a.e("s_mov_b64 exec, -1")
        a.e(f"s_branch {L(tag+'_ne')}")
        a.lab(L(tag + '_nn'))
        a.e("v_mov_b32 v29, 0")
        a.e(f"buffer_load_dword v30, v29, {sr(S_X,4)}, 0 offen")
        a.lab(L(tag + '_ne'))

    def main_loop(glu):
        tg = 'g' if glu else 's'
        lg = Cnt(a, "lgkmcnt", 15)
        NU = 5 if glu else 4
        FSZ = 8 + 4 * NU
        FR = 32; XA, WA = 8, 16
        ACC = 96 if glu else 128
        def reads(step):
            s, kk = step >> 2, step & 3
            b = s % 3
            fb = FR + FSZ * (step & 1)
            boff = (b * SB) if b < 2 else 0
            xa = XA + kk + (4 if b == 2 else 0)
            istr = 4096 if glu else 1024
            out = []
            def X(i): out.append((f"ds_read_b128 {vr(fb+4*i,4)}, v{xa} offset:{boff + i*istr}", (step, 'x', i)))
            def W(u):
                if glu:
                    wa = WA + (1 if b == 2 else 0)
                    o = boff + kk * 2560 + u * 32
                    out.append((f"ds_read_b64_tr_b16 {vr(fb+8+4*u,2)}, v{wa} offset:{o}", (step, 'w', u)))
                    out.append((f"ds_read_b64_tr_b16 {vr(fb+8+4*u+2,2)}, v{wa} offset:{o+640}", (step, 'w', u)))
                else:
                    o = (u & 1) * 8192 + (u >> 1) * 4096
                    out.append((f"ds_read_b128 {vr(fb+8+4*u,4)}, v{WA+kk+4*b} offset:{o}", (step, 'w', u)))
            X(0); W(0); X(1)
            for u in range(1, NU): W(u)
            if (nc & 2) and step > 0: return []
            return out
        a.e("s_barrier")
        stamp_at(1)
        for ins, tag in reads(0): a.e(ins); lg.issue(tag)
        NS = 4 * NST
        for step in range(NS):
            s, kk = step >> 2, step & 3
            fb = FR + FSZ * (step & 1)
            nxt = reads(step + 1) if step + 1 < NS else []
            need_bar = (kk == 3 and s < NST - 1)
            nm = 2 * NU
            start_rd = 2 if need_bar else 0
            ri = 0
            for mi in range(nm):
                u, i = mi >> 1, mi & 1
                lg.wait((step, 'x', i)); lg.wait((step, 'w', u))
                acc = vr(ACC + 16 * (u * 2 + i), 16)
                cin = "0" if step == 0 else acc
                if (nc & 1) and step > 0: pass
                elif glu: a.e(f"v_mfma_f32_32x32x16_bf16 {acc}, {vr(fb+8+4*u,4)}, {vr(fb+4*i,4)}, {cin}")
                else:   a.e(f"v_mfma_f32_32x32x16_bf16 {acc}, {vr(fb+4*i,4)}, {vr(fb+8+4*u,4)}, {cin}")
                if need_bar and mi == start_rd - 1:
                    lg.wait_all()
                    a.e("s_barrier")
                    if bst in (1, 2, 3) and s < 6: a.e(f"s_memrealtime s[{88+2*s}:{89+2*s}]")
                    if bst == 4 and s == 3: a.e("s_memrealtime s[88:89]"); a.e("s_memtime s[92:93]")
                    if bst == 4 and s == 8: a.e("s_memrealtime s[90:91]"); a.e("s_memtime s[94:95]")
                if mi >= start_rd:
                    rem_m = nm - 2 - mi
                    rem_r = len(nxt) - ri
                    k = rem_r if rem_m <= 0 else -(-rem_r // (rem_m + 1))
                    for _ in range(k):
                        ins, tag = nxt[ri]; a.e(ins); lg.issue(tag); ri += 1
            assert ri == len(nxt)
            if step == 19: stamp_at(2)
        stamp_at(3)
        a.e("s_waitcnt vmcnt(0)")
        a.e("s_barrier")
        a.e(f"v_mov_b32 v31, {T_NONCE:#x}")
        a.e("ds_read_b32 v30, v31")
        return ACC

    def read_nonce_finish():
        a.e("s_waitcnt lgkmcnt(0)")
        a.e(f"v_readfirstlane_b32 s{NONCE}, v30")

    def a2_flag():
        a.e("s_lshl_b32 s80, s6, 2"); a.e("s_add_u32 s80, s80, s5"); a.e("s_lshl_b32 s80, s80, 5"); a.e("s_add_u32 s80, s80, s7")
        a.e("s_lshl_b32 s80, s80, 2"); a.e(f"s_add_u32 s80, s80, {FA_O:#x}")
        a.e(f"v_mov_b32 v2, s{NONCE}")
        a.e("v_mov_b32 v3, 0")
        a.e("s_waitcnt vmcnt(0)")
        a.e("s_mov_b64 exec, 1")
        a.e(f"buffer_store_dword v2, v3, {sr(S_SY,4)}, s80 offen sc1")
        a.e("s_mov_b64 exec, -1")

    b_setup(True)
    a.lab(L('cglu'))
    a.c("================ compute GLU")
    l2_prefetch(True)
    a.e("v_lshrrev_b32 v2, 5, v1")
    a.e("v_and_b32 v3, 31, v1")
    a.e("s_lshl_b32 s11, s5, 6")
    a.e("v_add_u32 v3, s11, v3")
    frag_addrs(8, 3, 0)
    a.e("v_bfe_u32 v4, v1, 4, 1")
    a.e(f"v_mul_u32_u24 v4, {U_OFF-G_OFF}, v4")
    a.e("v_bfe_u32 v5, v1, 2, 2")
    a.e("v_lshl_add_u32 v5, v2, 3, v5")
    a.e("v_mul_u32_u24 v5, 160, v5")
    a.e("v_and_b32 v6, 3, v1")
    a.e("v_lshl_add_u32 v5, v6, 3, v5")
    a.e("v_add_u32 v16, v4, v5")
    a.e(f"v_add_u32 v16, {G_OFF}, v16")
    a.e(f"v_add_u32 v17, {2*SB:#x}, v16")
    a.e("v_bfe_u32 v4, v1, 4, 1")
    a.e(f"v_mul_u32_u24 v18, {TS}, v4")
    a.e("v_lshl_add_u32 v18, v2, 8, v18")
    a.e("v_and_b32 v4, 15, v1")
    a.e("v_lshl_add_u32 v18, v4, 4, v18")
    a.e("v_lshlrev_b32 v19, 3, v3")
    a.e(f"v_add_u32 v19, {T_STAT:#x}, v19")
    a.e("v_lshlrev_b32 v20, 4, v2")
    a.e(f"v_add_u32 v20, {T_CS:#x}, v20")
    a.e("s_lshl_b32 s12, s6, 4"); a.e("s_lshl_b32 s13, s5, 2"); a.e("s_add_u32 s12, s12, s13")
    a.e(f"s_mul_i32 s12, s12, {TS}")
    a.e("s_lshl_b32 s13, s10, 9"); a.e("s_add_u32 s12, s12, s13")
    a.e(f"s_add_u32 s12, s12, {40*1024}")
    a.e(f"s_add_u32 s13, s12, {2*TS}")
    if prio: a.e(f"s_setprio {prio}")
    ACC = main_loop(True)
    a.e("ds_read_b64 v[22:23], v19")
    a.e("ds_read_b64 v[24:25], v19 offset:256")
    CS = 32
    lg = Cnt(a, "lgkmcnt", 15); lg.issue('st', 3)
    def cs_reads(u):
        b = CS + 16 * (u % 3)
        for q in range(2):
            a.e(f"ds_read_b128 {vr(b+4*q,4)}, v20 offset:{(16*u+8*q)*4}"); lg.issue(('cs', u))
            a.e(f"ds_read_b128 {vr(b+8+4*q,4)}, v20 offset:{320+(16*u+8*q)*4}"); lg.issue(('cs', u))
    cs_reads(0); cs_reads(1)
    lg.wait('st')
    a.e("v_mul_f32 v23, v23, v23")
    a.e("v_mul_f32 v25, v25, v25")
    a.e(f"v_readfirstlane_b32 s{NONCE}, v30")
    OUT = 80; oi = 0
    for u in range(5):
        if u + 2 < 5: cs_reads(u + 2)
        lg.wait(('cs', u))
        b = CS + 16 * (u % 3)
        for i in range(2):
            A_ = ACC + 16 * (u * 2 + i); st = 22 + 2 * i
            for r in range(0, 16, 2):
                a.e(f"v_pk_fma_f32 {vr(A_+r,2)}, {vr(st,2)}, {vr(b+r,2)}, {vr(A_+r,2)} op_sel:[0,0,0] op_sel_hi:[0,1,1] neg_lo:[1,0,0] neg_hi:[1,0,0]")
            for r in range(0, 8, 2):
                a.e(f"v_pk_mul_f32 {vr(A_+r,2)}, {vr(A_+r,2)}, {vr(A_+8+r,2)}")
            for r in range(0, 8, 2):
                a.e(f"v_pk_mul_f32 {vr(A_+r,2)}, {vr(A_+r,2)}, {vr(st,2)} op_sel:[0,1] op_sel_hi:[1,1]")
            o = OUT + 4 * (oi % 4); oi += 1
            for r in range(4): a.e(f"v_cvt_pk_bf16_f32 v{o+r}, v{A_+2*r}, v{A_+2*r+1}")
            a.e(f"buffer_store_dwordx4 {vr(o,4)}, v18, {sr(S_A2,4)}, s{12+i} offen offset:{u*512} sc1")
    stamp_at(4)
    if dly: a.e("s_barrier")
    a2_flag()
    stamp_at(7)
    stamp_out(0, 8)
    a.e(f"s_branch {L('p2c')}")

    a.lab(L('ssm_b'))
    b_setup(False)
    a.lab(L('cssm'))
    a.c("================ compute SSM")
    a.e("v_and_b32 v7, 31, v1")
    a.e("s_lshl_b32 s11, s7, 6"); a.e("v_add_u32 v3, s11, v7"); a.e("v_lshlrev_b32 v3, 1, v3")
    PRM = 80
    for k, P_ in enumerate((P_LRE, P_LIM, P_LDT)):
        srd(a, S_1, P_, P_ + 1, 0, 1280)
        for P in range(2):
            a.e(f"buffer_load_ushort v{PRM+3*P+k}, v3, {sr(S_1,4)}, 0 offen offset:{64*P}")
    l2_prefetch(False)
    a.e("v_lshrrev_b32 v2, 5, v1")
    a.e("v_and_b32 v7, 31, v1")
    a.e("v_bfe_u32 v3, v7, 2, 1"); a.e("v_lshlrev_b32 v3, 5, v3")
    a.e("v_and_b32 v4, 1, v7"); a.e("v_lshl_or_b32 v3, v4, 4, v3")
    a.e("v_bfe_u32 v4, v7, 3, 2"); a.e("v_lshl_or_b32 v3, v4, 1, v3")
    a.e("v_bfe_u32 v4, v7, 1, 1"); a.e("v_or_b32 v3, v3, v4")
    a.e("s_lshl_b32 s11, s5, 6"); a.e("v_add_u32 v3, s11, v3")
    frag_addrs(8, 3, 0)
    frag_addrs(16, 7, BRE_OFF, three=True)
    a.e("s_lshl_b32 s11, s5, 8")
    a.e("v_lshl_add_u32 v108, v2, 7, s11"); a.e(f"v_add_u32 v108, {T_STAT:#x}, v108")
    a.e("v_lshlrev_b32 v109, 2, v7"); a.e(f"v_add_u32 v109, {T_CS:#x}, v109")
    a.e("s_lshl_b32 s11, s5, 4")
    a.e("v_lshl_add_u32 v110, v2, 3, s11"); a.e("v_lshl_add_u32 v110, v7, 6, v110")
    a.e("v_lshlrev_b32 v111, 6, v1")
    IMG = 16384
    a.e("s_mul_i32 s11, s5, 18432"); a.e(f"s_add_u32 s11, s11, {IMG}")
    a.e("v_mul_u32_u24 v112, 144, v7"); a.e("v_lshl_add_u32 v112, v2, 6, v112"); a.e("v_add_u32 v112, s11, v112")
    a.e("v_lshrrev_b32 v4, 4, v1"); a.e("v_bfe_u32 v5, v1, 2, 2"); a.e("v_lshl_add_u32 v4, v4, 3, v5")
    a.e("v_mul_u32_u24 v113, 144, v4"); a.e("v_and_b32 v4, 3, v1"); a.e("v_lshl_add_u32 v113, v4, 3, v113"); a.e("v_add_u32 v113, s11, v113")
    a.e("v_lshlrev_b32 v114, 4, v1")
    a.e("s_lshl_b32 s12, s6, 4"); a.e("s_lshl_b32 s13, s5, 2"); a.e("s_add_u32 s12, s12, s13")
    a.e(f"s_mul_i32 s12, s12, {TS}")
    a.e("s_lshl_b32 s13, s7, 11"); a.e("s_add_u32 s12, s12, s13")
    AC = 88
    a.e(f"s_waitcnt vmcnt({2 if pf else 0})")
    for P in range(2):
        o = AC + 8 * P
        gen_abar(a, PRM + 3 * P, PRM + 3 * P + 1, PRM + 3 * P + 2, o, 116)
        lr, li_ = PRM + 3 * P, PRM + 3 * P + 1
        a.e(f"v_add_f32 v116, -1.0, v{o}")
        a.e(f"v_mul_f32 v117, v{lr}, v{lr}"); a.e(f"v_fmac_f32 v117, v{li_}, v{li_}")
        a.e("v_rcp_f32 v117, v117")
        a.e(f"v_mul_f32 v118, v116, v{lr}"); a.e(f"v_fmac_f32 v118, v{o+1}, v{li_}")
        a.e(f"v_mul_f32 v119, v{o+1}, v{lr}"); a.e(f"v_fma_f32 v119, -v116, v{li_}, v119")
        a.e("v_add_f32 v117, v117, v117")
        a.e(f"v_mul_f32 v{o+6}, v118, v117"); a.e(f"v_mul_f32 v{o+7}, v119, v117")
        csq(a, o + 2, o, 116)
        for _ in range(3): csq(a, o + 2, o + 2, 116)
        csq(a, o + 4, o + 2, 116)
        for _ in range(3): csq(a, o + 4, o + 4, 116)
    a.e("v_cmp_eq_u32 vcc, 1, v2")
    a.e("s_nop 1")
    for k in range(4): a.e(f"v_cndmask_b32 v{104+k}, v{AC+2+k}, v{AC+8+2+k}, vcc")
    if prio: a.e(f"s_setprio {prio}")
    ACC = main_loop(False)
    accr = lambda P, pl, i: ACC + 16 * ((P * 2 + pl) * 2 + i)
    MEAN, RSTD = 32, 0
    MEAN, RSTD = 16, 48
    a.e("s_waitcnt lgkmcnt(0)")
    a.e(f"v_readfirstlane_b32 s{NONCE}, v30")
    for k in range(8): a.e(f"ds_read_b128 {vr(MEAN+4*k,4)}, v108 offset:{16*k}")
    for k in range(4): a.e(f"ds_read_b32 v{80+k}, v109 offset:{(k&1)*256 + (k>>1)*128}")
    a.e("s_waitcnt lgkmcnt(0)")
    for k in range(8): a.e(f"ds_read_b128 {vr(RSTD+4*k,4)}, v108 offset:{1024+16*k}")
    for P in range(2):
        for pl in range(2):
            for i in range(2):
                A_ = accr(P, pl, i)
                for r in range(0, 16, 2):
                    a.e(f"v_pk_fma_f32 {vr(A_+r,2)}, {vr(MEAN+16*i+r,2)}, {vr(80+2*P,2)}, {vr(A_+r,2)} op_sel:[0,{pl},0] op_sel_hi:[1,{pl},1] neg_lo:[1,0,0] neg_hi:[1,0,0]")
    a.e("s_waitcnt lgkmcnt(0)")
    H = 8; T = 116
    def scan_step(P, ure, uim, hre, him, dre, dim):
        ap = vr(AC + 8 * P, 2); t0, t1 = T + 4 * P, T + 4 * P + 2
        a.e(f"v_pk_fma_f32 {vr(t0,2)}, {ap}, {vr(him,2)}, {vr(ure,2)} op_sel:[1,0,0] op_sel_hi:[1,1,1] neg_lo:[1,0,0] neg_hi:[1,0,0]")
        a.e(f"v_pk_fma_f32 {vr(t1,2)}, {ap}, {vr(hre,2)}, {vr(uim,2)} op_sel:[1,0,0] op_sel_hi:[1,1,1]")
        return [f"v_pk_fma_f32 {vr(dre,2)}, {ap}, {vr(hre,2)}, {vr(t0,2)} op_sel:[0,0,0] op_sel_hi:[0,1,1]",
                f"v_pk_fma_f32 {vr(dim,2)}, {ap}, {vr(him,2)}, {vr(t1,2)} op_sel:[0,0,0] op_sel_hi:[0,1,1]"]
    for i in range(2):
        for pi in range(8):
            r = 2 * pi
            for P in range(2):
                for pl in range(2):
                    A_ = accr(P, pl, i) + r
                    a.e(f"v_pk_mul_f32 {vr(A_,2)}, {vr(A_,2)}, {vr(RSTD+16*i+r,2)}")
            if i == 0 and pi == 0: continue
            post = []
            for P in range(2):
                hre, him = (accr(P, 0, 0), accr(P, 1, 0)) if (i == 0 and pi == 1) else (H + 4 * P, H + 4 * P + 2)
                post += scan_step(P, accr(P, 0, i) + r, accr(P, 1, i) + r, hre, him, H + 4 * P, H + 4 * P + 2)
            for x in post: a.e(x)
    for P in range(2):
        a.e(f"ds_write_b64 v110, {vr(H+4*P,2)} offset:{P*2048}")
        a.e(f"ds_write_b64 v110, {vr(H+4*P+2,2)} offset:{4096+P*2048}")
    a.e("s_waitcnt lgkmcnt(0)")
    a.e("s_barrier")
    stamp_at(4)
    def cmul_pairs(P, re, im):
        cp = vr(AC + 8 * P + 6, 2); t0, t1 = T + 4 * P, T + 4 * P + 2
        a.e(f"v_pk_mul_f32 {vr(t0,2)}, {cp}, {vr(im,2)} op_sel:[1,0] op_sel_hi:[1,1]")
        a.e(f"v_pk_mul_f32 {vr(t1,2)}, {cp}, {vr(re,2)} op_sel:[1,0] op_sel_hi:[1,1]")
        return [f"v_pk_fma_f32 {vr(re,2)}, {cp}, {vr(re,2)}, {vr(t0,2)} op_sel:[0,0,0] op_sel_hi:[0,1,1] neg_lo:[0,0,1] neg_hi:[0,0,1]",
                f"v_pk_fma_f32 {vr(im,2)}, {cp}, {vr(im,2)}, {vr(t1,2)} op_sel:[0,0,0] op_sel_hi:[0,1,1]"]
    def scale_u():
        for i in range(2):
            for r in range(0, 16, 2):
                post = []
                for P in range(2): post += cmul_pairs(P, accr(P, 0, i) + r, accr(P, 1, i) + r)
                for x in post: a.e(x)
    a.e("s_cmp_eq_u32 s5, 0")
    a.e(f"s_cbranch_scc1 {L('ssm_w0')}")
    scale_u()
    a.e(f"s_branch {L('ssm_wait')}")
    a.lab(L('ssm_w0'))
    ER, EI, CR, CI = 16, 32, 48, 64
    for k in range(4):
        a.e(f"ds_read_b128 {vr(ER+4*k,4)}, v111 offset:{16*k}")
        a.e(f"ds_read_b128 {vr(EI+4*k,4)}, v111 offset:{4096+16*k}")
    a.e("s_waitcnt lgkmcnt(0)")
    def cfma(dr, di, ar_, hr, hi, ur, ui, t):
        a.e(f"v_fma_f32 v{t}, -v{ar_+1}, v{hi}, v{ur}")
        a.e(f"v_fma_f32 v{t+1}, v{ar_+1}, v{hr}, v{ui}")
        a.e(f"v_fma_f32 v{dr}, v{ar_}, v{hr}, v{t}")
        a.e(f"v_fma_f32 v{di}, v{ar_}, v{hi}, v{t+1}")
    cfma(8, 10, 104, ER, EI, ER + 1, EI + 1, T)
    for j in range(2, 16): cfma(8, 10, 104, 8, 10, ER + j, EI + j, T)
    a.e(f"v_mov_b32 v9, s{NONCE}"); a.e(f"v_mov_b32 v11, s{NONCE}")
    a.e("s_lshl_b32 s13, s7, 13"); a.e(f"s_add_u32 s13, s13, {LB_O:#x}")
    a.e("s_lshl_b32 s80, s6, 10"); a.e("s_add_u32 s80, s80, s13")
    a.e(f"buffer_store_dwordx4 v[8:11], v114, {sr(S_SY,4)}, s80 offen sc1")
    scale_u()
    a.e(f"v_mov_b32 v{CR}, 0"); a.e(f"v_mov_b32 v{CI}, 0")
    a.e("s_cmp_eq_u32 s6, 0")
    a.e(f"s_cbranch_scc1 {L('lb_done')}")
    a.e("s_mov_b32 s80, 0")
    a.e("s_add_u32 s81, s13, 4096")
    a.lab(L('poll'))
    GB = [52, 56, 60, 68, 72, 76, 12]
    for j in range(7):
        a.e(f"buffer_load_dwordx4 {vr(GB[j],4)}, v114, {sr(S_SY,4)}, s{13 if j < 4 else 81} offen offset:{(j&3)*1024} sc1")
    a.e("s_waitcnt vmcnt(0)")
    a.e("s_mov_b64 s[82:83], 0")
    for j in range(7):
        a.e(f"s_cmp_le_u32 s6, {j}")
        a.e(f"s_cbranch_scc1 {L('chk_end')}")
        a.e(f"v_cmp_ne_u32 vcc, s{NONCE}, v{GB[j]+1}"); a.e("s_or_b64 s[82:83], s[82:83], vcc")
        a.e(f"v_cmp_ne_u32 vcc, s{NONCE}, v{GB[j]+3}"); a.e("s_or_b64 s[82:83], s[82:83], vcc")
    a.lab(L('chk_end'))
    a.e("s_cmp_eq_u64 s[82:83], 0")
    a.e(f"s_cbranch_scc1 {L('poll_ok')}")
    a.e("s_add_u32 s80, s80, 1")
    a.e(f"s_cmp_lt_u32 s80, {SPIN:#x}")
    a.e(f"s_cbranch_scc0 {L('poll_ok')}")
    a.e("s_sleep 1")
    a.e(f"s_branch {L('poll')}")
    a.lab(L('poll_ok'))
    for j in range(7):
        a.e(f"s_cmp_le_u32 s6, {j}")
        a.e(f"s_cbranch_scc1 {L('lb_done')}")
        cfma(CR, CI, 106, CR, CI, GB[j], GB[j] + 2, T)
    a.lab(L('lb_done'))
    stamp_at(5)
    for j in range(15): cfma(CR + j + 1, CI + j + 1, 104, CR + j, CI + j, ER + j, EI + j, T)
    for k in range(4):
        a.e(f"ds_write_b128 v111, {vr(CR+4*k,4)} offset:{8192+16*k}")
        a.e(f"ds_write_b128 v111, {vr(CI+4*k,4)} offset:{12288+16*k}")
    a.e("s_waitcnt lgkmcnt(0)")
    a.lab(L('ssm_wait'))
    a.e("s_barrier")
    for P in range(2):
        a.e(f"ds_read_b64 {vr(H+4*P,2)}, v110 offset:{8192+P*2048}")
        a.e(f"ds_read_b64 {vr(H+4*P+2,2)}, v110 offset:{12288+P*2048}")
    a.e("s_waitcnt lgkmcnt(0)")
    post = []
    for P in range(2): post += cmul_pairs(P, H + 4 * P, H + 4 * P + 2)
    for x in post: a.e(x)
    for i in range(2):
        for pi in range(8):
            r = 2 * pi; post = []
            for P in range(2):
                if i == 0 and pi == 0: hre, him = H + 4 * P, H + 4 * P + 2
                elif pi == 0: hre, him = accr(P, 0, 0) + 14, accr(P, 1, 0) + 14
                else: hre, him = accr(P, 0, i) + r - 2, accr(P, 1, i) + r - 2
                post += scan_step(P, accr(P, 0, i) + r, accr(P, 1, i) + r, hre, him, accr(P, 0, i) + r, accr(P, 1, i) + r)
            for x in post: a.e(x)
        for P in range(2):
            for pl in range(2):
                for e_ in range(2):
                    A_ = accr(P, pl, i); o = 16 + 4 * ((P * 2 + pl) * 2 + e_) + 32 * i
                    for k in range(4): a.e(f"v_cvt_pk_bf16_f32 v{o+k}, {'-' if pl else ''}v{A_+4*k+e_}, {'-' if pl else ''}v{A_+4*k+2+e_}")
                    a.e(f"ds_write_b128 v112, {vr(o,4)} offset:{pl*9216 + P*32*144 + 32*e_ + 16*i}")
    a.e("s_waitcnt lgkmcnt(0)")
    R = 128; n = 0; lg = Cnt(a, "lgkmcnt", 15); fr = []
    def st_frag(m, r2, tq2, pl2, P2):
        lg.wait(m)
        if pl2 == 0 and P2 == 0:
            a.e(f"s_add_u32 s13, s12, {tq2*TS}"); a.e(f"s_add_u32 s80, s13, {20*1024}")
        a.e(f"buffer_store_dwordx4 {vr(r2,4)}, v114, {sr(S_A2,4)}, s{13 if pl2 == 0 else 80} offen offset:{P2*1024} sc1")
    for tq in range(4):
        for pl in range(2):
            for P in range(2):
                o = pl * 9216 + P * 32 * 144 + tq * 32; rr = R + 4 * n
                a.e(f"ds_read_b64_tr_b16 {vr(rr,2)}, v113 offset:{o}"); lg.issue(n)
                a.e(f"ds_read_b64_tr_b16 {vr(rr+2,2)}, v113 offset:{o+576}"); lg.issue(n)
                fr.append((n, rr, tq, pl, P)); n += 1
                if n >= 4: st_frag(*fr.pop(0))
    for f in fr: st_frag(*f)
    a.e("s_barrier")
    stamp_at(6)
    a2_flag()
    stamp_at(7)
    stamp_out(0, 8)

    a.lab(L('p2c'))
    a.c("================ phase-2 compute")
    ph[0] = 1
    stamp_at(0)
    def k2rot(dst):
        if not rot2: a.e(f"s_mov_b32 s{dst}, 0"); return
        a.e("s_and_b32 s80, s4, 3"); a.e(f"s_mul_i32 s80, s80, {14 if rot2 == 1 else 2*rot2}"); a.e("s_lshr_b32 s81, s4, 2"); a.e(f"s_mul_i32 s81, s81, {6 if rot2 == 1 else 0}"); a.e(f"s_add_u32 s{dst}, s80, s81")
        a.e(f"s_sub_u32 s80, s{dst}, 54"); a.e(f"s_cmp_ge_u32 s{dst}, 54"); a.e(f"s_cselect_b32 s{dst}, s80, s{dst}")
    def k2map():
        a.e("s_lshr_b32 s12, s4, 2"); a.e("s_lshr_b32 s13, s3, 1"); a.e("s_lshl_b32 s13, s13, 3"); a.e("s_add_u32 s12, s12, s13")
        a.e("s_and_b32 s13, s3, 1"); a.e("s_lshl_b32 s13, s13, 2"); a.e("s_and_b32 s80, s4, 3"); a.e("s_add_u32 s13, s13, s80")
    k2map()
    S_D, S_O = S_1, S_2
    srd(a, S_D, P_DSK, P_DSK + 1, 0, 1280)
    srd(a, S_O, P_OUT, P_OUT + 1, 0, 2048 * 2560)
    a.e("v_lshlrev_b32 v3, 4, v1")
    a.e("s_and_b32 s10, s5, 1"); a.e("s_lshr_b32 s11, s5, 1")
    a.e("s_lshl_b32 s6, s12, 2"); a.e("s_lshl_b32 s80, s10, 1"); a.e("s_add_u32 s6, s6, s80")
    a.e(f"s_mul_i32 s7, s6, {TS}"); a.e("s_lshl_b32 s80, s11, 10"); a.e("s_add_u32 s7, s7, s80")
    a.e("s_add_u32 s6, s6, s11")
    a.e(f"v_add_u32 v2, {TS:#x}, v3")
    NWB = 2; AF = 16; WF = AF + 8 * AD; AC2 = WF + 20 * NWB; EP = AC2 + 40
    VX, VD, VS, VB, T2 = EP, EP + 10, EP + 20, EP + 24, EP + 44
    vm = Cnt(a, "vmcnt", 63); lg = Cnt(a, "lgkmcnt", 15)
    a.e("v_and_b32 v4, 15, v1"); a.e("s_lshl_b32 s80, s6, 4"); a.e("v_add_u32 v4, s80, v4")
    a.e("v_lshrrev_b32 v5, 4, v1"); a.e("v_lshlrev_b32 v5, 2, v5"); a.e("s_mul_i32 s80, s13, 80"); a.e("v_add_u32 v5, s80, v5")
    a.e("v_mul_u32_u24 v6, 640, v4"); a.e("v_add_u32 v6, v6, v5")
    a.e("v_lshlrev_b32 v7, 2, v6"); a.e("v_lshlrev_b32 v6, 1, v6"); a.e("v_lshlrev_b32 v5, 1, v5"); a.e("v_lshlrev_b32 v4, 4, v4")
    for j in range(5):
        a.e(f"buffer_load_dwordx2 {vr(VX+2*j,2)}, v6, {sr(S_X,4)}, 0 offen offset:{32*j}")
        a.e(f"buffer_load_dwordx2 {vr(VD+2*j,2)}, v5, {sr(S_D,4)}, 0 offen offset:{32*j}")
    a.e("v_and_b32 v10, 31, v1"); a.e("v_lshlrev_b32 v10, 2, v10")
    a.e("s_lshl_b32 s9, s12, 7"); a.e(f"s_add_u32 s9, s9, {FA_O:#x}")
    def poll_a2(tag, mask):
        a.e("s_mov_b32 s80, 0")
        a.lab(L(tag))
        a.e(f"buffer_load_dword v11, v10, {sr(S_SY,4)}, s9 offen sc1")
        a.e("s_waitcnt vmcnt(0)")
        a.e(f"v_cmp_ne_u32 vcc, s{NONCE}, v11")
        a.e(f"s_and_b32 s82, vcc_lo, {mask:#x}")
        a.e(f"s_cbranch_scc0 {L(tag+'_ok')}")
        a.e("s_add_u32 s80, s80, 1")
        a.e(f"s_cmp_lt_u32 s80, {SPIN:#x}")
        a.e(f"s_cbranch_scc0 {L(tag+'_ok')}")
        a.e("s_sleep 2")
        a.e(f"s_branch {L(tag)}")
        a.lab(L(tag + '_ok'))
        vm.q = []
    k2rot(0)
    def aload(u):
        if u < 27:
            a.e("s_lshl_b32 s80, s0, 10"); a.e("s_add_u32 s80, s80, s7"); a.e(f"s_add_u32 s80, s80, {40*1024}")
            a.e("s_add_u32 s0, s0, 2"); a.e("s_cmp_eq_u32 s0, 54"); a.e("s_cselect_b32 s0, 0, s0")
        else: a.e(f"s_add_u32 s80, s7, {KS[2*u]*1024}")
        if (x2 & 1) and u >= AD: return
        for i in range(2):
            a.e(f"buffer_load_dwordx4 {vr(AF+8*(u%AD)+4*i,4)}, v{3 if i == 0 else 2}, {sr(S_A2,4)}, s80 offen {'' if nosc else 'sc1'}")
        vm.issue(('a', u), 2)
    def base_calc():
        mean, rstd = VS, VS + 2
        for j in range(5):
            x0, x1, d0, d1 = VX + 2*j, VX + 2*j + 1, VD + 2*j, VD + 2*j + 1
            X = VB + 4 * j; Dd = T2; t = T2 + 4
            a.e(f"v_lshlrev_b32 v{X}, 16, v{x0}"); a.e(f"v_and_b32 v{X+1}, 0xffff0000, v{x0}")
            a.e(f"v_lshlrev_b32 v{X+2}, 16, v{x1}"); a.e(f"v_and_b32 v{X+3}, 0xffff0000, v{x1}")
            a.e(f"v_lshlrev_b32 v{Dd}, 16, v{d0}"); a.e(f"v_and_b32 v{Dd+1}, 0xffff0000, v{d0}")
            a.e(f"v_lshlrev_b32 v{Dd+2}, 16, v{d1}"); a.e(f"v_and_b32 v{Dd+3}, 0xffff0000, v{d1}")
            for k in range(4): a.e(f"v_sub_f32 v{t+k}, v{X+k}, v{mean}")
            def rnd():
                a.e(f"v_cvt_pk_bf16_f32 v{t+4}, v{t}, v{t+1}"); a.e(f"v_cvt_pk_bf16_f32 v{t+5}, v{t+2}, v{t+3}")
                a.e(f"v_lshlrev_b32 v{t}, 16, v{t+4}"); a.e(f"v_and_b32 v{t+1}, 0xffff0000, v{t+4}")
                a.e(f"v_lshlrev_b32 v{t+2}, 16, v{t+5}"); a.e(f"v_and_b32 v{t+3}, 0xffff0000, v{t+5}")
            rnd()
            for k in range(4): a.e(f"v_mul_f32 v{t+k}, v{t+k}, v{rstd}")
            rnd()
            for k in range(4): a.e(f"v_mul_f32 v{t+k}, v{t+k}, v{Dd+k}")
            rnd()
            for k in range(4): a.e(f"v_add_f32 v{X+k}, v{t+k}, v{X+k}")
    a.e("v_lshrrev_b32 v12, 5, v1"); a.e("v_lshlrev_b32 v12, 4, v12"); a.e("v_bfe_u32 v13, v1, 4, 1"); a.e("v_lshl_add_u32 v12, v13, 2, v12")
    a.e("v_bfe_u32 v13, v1, 2, 2"); a.e("v_add_u32 v12, v12, v13"); a.e("v_mul_u32_u24 v12, 160, v12")
    a.e("v_and_b32 v13, 3, v1"); a.e("v_lshl_add_u32 v12, v13, 3, v12"); a.e("s_mul_i32 s80, s11, 5120"); a.e("v_add_u32 v12, s80, v12")
    a.e("v_lshrrev_b32 v13, 4, v1"); a.e("v_and_b32 v14, 7, v1"); a.e("v_xor_b32 v13, v13, v14"); a.e("s_lshl_b32 s80, s11, 2"); a.e("v_xor_b32 v13, s80, v13")
    a.e("v_and_b32 v15, 15, v1"); a.e("v_lshlrev_b32 v15, 7, v15"); a.e("v_lshl_add_u32 v13, v13, 4, v15")
    RA = T2 + 10
    for k, r in enumerate((12, 13)):
        a.e(f"v_mov_b32 v{RA+3*k}, v{r}"); a.e(f"v_add_u32 v{RA+3*k+1}, 0x10000, v{r}"); a.e(f"v_add_u32 v{RA+3*k+2}, 0x20000, v{r}")
    XB = 40960
    a.e("s_mul_i32 s80, s5, 5120"); a.e(f"s_add_u32 s80, s80, {XB}"); a.e("v_add_u32 v14, s80, v3")
    a.e("s_xor_b32 s80, s5, 2"); a.e("s_mul_i32 s80, s80, 5120"); a.e(f"s_add_u32 s80, s80, {XB}"); a.e("v_add_u32 v15, s80, v3")
    def wreads(u):
        s, k2 = divmod(u, 2)
        off = ((s + SLOT0) % RING) * SPS * 5120 + k2 * 10240
        out = []
        for j in range(5):
            d = WF + 20 * (u % NWB) + 4 * j
            if u < 27:
                for hf in range(2):
                    o = off + j * 32 + hf * 8 * 160
                    out.append((f"ds_read_b64_tr_b16 {vr(d+2*hf,2)}, v{RA + (o >> 16)} offset:{o & 65535}", ('w', u, j)))
            else:
                o = off + j * 2048
                out.append((f"ds_read_b128 {vr(d,4)}, v{RA + 3 + (o >> 16)} offset:{o & 65535}", ('w', u, j)))
        return out
    poll_a2('pollg', 0xfffffc00)
    stamp_at(1)
    for u in range(AD - 1): aload(u)
    a.e("s_barrier")
    stamp_at(2)
    if clk: a.e("s_memtime s[84:85]")
    for ins, tag in wreads(0): a.e(ins); lg.issue(tag)
    for u in range(47):
        nxt = wreads(u + 1) if u + 1 < 47 else []
        if nxt and (u + 1) % 2 == 0:
            a.e("s_barrier")
        vm.wait(('a', u))
        per = len(nxt) // 5
        for j in range(5):
            lg.wait(('w', u, j))
            for i in range(2):
                acc = vr(AC2 + 20 * i + 4 * j, 4)
                if not (x2 & 4) or u == 0: a.e(f"v_mfma_f32_16x16x32_bf16 {acc}, {vr(WF+20*(u%NWB)+4*j,4)}, {vr(AF+8*(u%AD)+4*i,4)}, {'0' if u == 0 else acc}")
                if i < per: x = nxt[j*per + i]; a.e(x[0]); lg.issue(x[1])
        un = u + AD - 1
        if un == 27:
            stamp_at(3)
            poll_a2('polls', 0x3ff)
            stamp_at(4)
            a.e(f"buffer_load_dwordx4 {vr(VS,4)}, v4, {sr(S_SY,4)}, 0 offen sc1"); vm.issue('vs')
        if un < 47: aload(un)
        if u == 30:
            vm.wait('vs')
            base_calc()
    stamp_at(5)
    if clk: a.e("s_memtime s[86:87]")
    a.e("s_cmp_eq_u32 s11, 0")
    a.e(f"s_cbranch_scc1 {L('xk0')}")
    a.e("s_nop 6")
    for j in range(5): a.e(f"ds_write_b128 v14, {vr(AC2+4*j,4)} offset:{1024*j}")
    for r in range(20): a.e(f"v_add_f32 v{VB+r}, v{VB+r}, v{AC2+20+r}")
    a.e(f"s_branch {L('xk1')}")
    a.lab(L('xk0'))
    a.e("s_nop 6")
    for j in range(5): a.e(f"ds_write_b128 v14, {vr(AC2+20+4*j,4)} offset:{1024*j}")
    for r in range(20): a.e(f"v_add_f32 v{VB+r}, v{VB+r}, v{AC2+r}")
    a.lab(L('xk1'))
    a.e("s_waitcnt lgkmcnt(0)")
    a.e("s_barrier")
    for j in range(5): a.e(f"ds_read_b128 {vr(WF+4*j,4)}, v15 offset:{1024*j}")
    for j in range(5):
        b = WF + 4 * j
        a.e(f"s_waitcnt lgkmcnt({4-j})")
        a.e(f"v_pk_add_f32 {vr(b,2)}, {vr(b,2)}, {vr(VB+4*j,2)}")
        a.e(f"v_pk_add_f32 {vr(b+2,2)}, {vr(b+2,2)}, {vr(VB+4*j+2,2)}")
        a.e(f"buffer_store_dwordx4 {vr(b,4)}, v7, {sr(S_O,4)}, 0 offen offset:{64*j} {outflag}")
    if stamp:
        stamp_at(6)
        a.e("s_waitcnt vmcnt(0)")
        stamp_at(7)
        stamp_out(1, 8)
    a.e("s_endpgm")

    def helper(glu):
        ph[0] = 2
        tg = 'hg' if glu else 'hs'
        vm = Cnt(a, "vmcnt", 63)
        NB = 5 if glu else 4
        bstep = 64 * 3456 if glu else 128
        vm.issue(('st', 0), 8 + NB)
        def dma_groups(s):
            b = s % 3
            g = []
            pre = ["s_add_u32 s0, s0, 1", "s_cmp_eq_u32 s0, 10", "s_cselect_b32 s0, 0, s0", "s_lshl_b32 s1, s0, 7", "s_add_u32 s1, s1, s12"]
            for j in range(8):
                if j in (0, 4): pre += [f"s_add_u32 m0, s13, {b*SB + (4096 if j >= 4 else 0)}", "s_nop 0"]
                g.append(pre + [f"buffer_load_dwordx4 v{DA+j}, {sr(S_X,4)}, s1 offen offset:{(j&3)*1024} lds"]); pre = []
            pre = [f"s_mul_i32 s1, s0, {bstep}", "s_add_u32 s1, s1, s101"]
            for jj in range(NB):
                if jj in (0, 4): pre += [f"s_add_u32 m0, s100, {b*SB + (4096 if jj >= 4 else 0)}", "s_nop 0"]
                g.append(pre + [f"buffer_load_dwordx4 v{DB+jj}, {sr(S_WB,4)}, s1 offen offset:{(jj&3)*1024} lds"]); pre = []
            return g
        def dma(s):
            for g in dma_groups(s):
                for x in g: a.e(x)
            vm.issue(('st', s), 8 + NB)
        def weave(s, start, track=True):
            work = a.lines[start:]; del a.lines[start:]
            gs = dma_groups(s)
            per = -(-len(work) // len(gs))
            for i, g in enumerate(gs):
                for x in g: a.e(x)
                a.lines += work[i*per:(i+1)*per]
            if track: vm.issue(('st', s), 8 + NB)
        def hst3(k):
            if bst == 3: a.e(f"s_memrealtime s[{84+2*k}:{85+2*k}]")
        def hst(b, mode):
            if bst == mode and b < 6: a.e(f"s_memrealtime s[{88+2*b}:{89+2*b}]")
        XU = 108; RS = 8; CSD = 160; CA = 128
        WD1, WD2 = 64, 72
        a.e("s_lshl_b32 s80, s6, 8"); a.e("s_lshl_b32 s81, s7, 3"); a.e("s_add_u32 s80, s80, s81"); a.e("s_lshl_b32 s81, s14, 1"); a.e("s_add_u32 s80, s80, s81")
        a.e("v_lshrrev_b32 v2, 5, v1"); a.e("v_add_u32 v100, s80, v2")
        a.e("v_mul_u32_u24 v2, 1280, v100"); a.e("v_and_b32 v3, 31, v1"); a.e("v_lshl_add_u32 v2, v3, 3, v2")
        for i in range(5):
            a.e(f"buffer_load_dwordx2 {vr(RS+2*i,2)}, v2, {sr(S_X,4)}, 0 offen offset:{256*i}")
        vm.issue('side', 5)
        if glu:
            a.e("s_mul_i32 s80, s6, 80"); a.e("s_and_b32 s81, s14, 1"); a.e("s_mul_i32 s81, s81, 40"); a.e("s_add_u32 s80, s80, s81")
            a.e("v_lshrrev_b32 v2, 4, v1"); a.e("v_add_u32 v2, s80, v2"); a.e("v_mul_u32_u24 v2, 3456, v2")
            a.e("v_and_b32 v3, 15, v1"); a.e("v_min_u32 v3, 9, v3"); a.e("v_lshl_add_u32 v102, v3, 4, v2")
            for i in range(10):
                a.e(f"s_add_u32 s83, s101, {4*i*3456}")
                a.e(f"buffer_load_dwordx4 {vr(CSD+4*i,4)}, v102, {sr(S_WB,4)}, s83 offen")
            vm.issue('side', 10)
        else:
            a.e("s_and_b32 s81, s14, 1"); a.e("s_lshl_b32 s81, s81, 5")
            a.e("v_and_b32 v2, 15, v1"); a.e("v_add_u32 v2, s81, v2"); a.e("v_mul_u32_u24 v2, 1280, v2")
            a.e("s_mul_i32 s80, s6, 160"); a.e("v_add_u32 v2, s80, v2")
            a.e("v_lshrrev_b32 v3, 4, v1"); a.e("v_lshl_add_u32 v102, v3, 4, v2")
            a.e("v_min_u32 v3, 1, v3"); a.e("v_lshl_add_u32 v107, v3, 4, v2"); a.e("v_add_u32 v107, 128, v107")
            a.e(f"s_add_u32 s11, s101, {16*1280}")
            for rs_ in range(2):
                for i in range(3):
                    a.e(f"buffer_load_dwordx4 {vr(CSD+4*(3*rs_+i),4)}, v{102 if i < 2 else 107}, {sr(S_WB,4)}, s{101 if rs_ == 0 else 11} offen offset:{64 if i == 1 else 0}")
            vm.issue('side', 6)
        srd(a, S_3, P_DBG, P_DBG + 1, 0, 256)
        a.e("v_mov_b32 v101, 0")
        vm.wait(('st', 0))
        a.e("s_barrier")
        stamp_at(1)
        a.e("s_lshl_b32 s80, s2, 2"); a.e("s_add_u32 s80, s80, s14")
        a.e("s_cmp_lg_u32 s80, 0")
        a.e(f"s_cbranch_scc1 {L(tg+'_nn')}")
        a.e("s_memrealtime s[82:83]")
        a.e("s_waitcnt lgkmcnt(0)")
        a.e("s_or_b32 s82, s82, 1")
        a.e("v_mov_b32 v2, s82")
        a.e("s_mov_b64 exec, 1")
        a.e(f"buffer_store_dword v2, v101, {sr(S_3,4)}, 0 offen sc1")
        a.e("s_mov_b64 exec, -1")
        a.e("s_waitcnt vmcnt(0)")
        a.lab(L(tg + '_nn'))
        dma(1); dma(2)
        hst(0, 2); vm.wait(('st', 1)); hst(0, 1); a.e("s_barrier")
        w0 = len(a.lines)
        for k in range(10):
            a.e(f"v_lshlrev_b32 v{XU+2*k}, 16, v{RS+k}"); a.e(f"v_and_b32 v{XU+2*k+1}, 0xffff0000, v{RS+k}")
        a.e(f"v_add_f32 v2, v{XU}, v{XU+1}"); a.e(f"v_add_f32 v3, v{XU+2}, v{XU+3}")
        for k in range(4, 20, 2):
            a.e(f"v_add_f32 v2, v2, v{XU+k}"); a.e(f"v_add_f32 v3, v3, v{XU+k+1}")
        a.e("v_add_f32 v2, v2, v3")
        red16(a, [2]); swap_add(a, [2], 4, 16)
        a.e(f"v_mul_f32 v2, {0x3acccccd:#x}, v2")
        for k in range(20): a.e(f"v_sub_f32 v{XU+k}, v{XU+k}, v2")
        a.e(f"v_mul_f32 v3, v{XU}, v{XU}"); a.e(f"v_mul_f32 v4, v{XU+1}, v{XU+1}")
        for k in range(2, 20, 2):
            a.e(f"v_fmac_f32 v3, v{XU+k}, v{XU+k}"); a.e(f"v_fmac_f32 v4, v{XU+k+1}, v{XU+k+1}")
        a.e("v_add_f32 v3, v3, v4")
        red16(a, [3]); swap_add(a, [3], 4, 16)
        a.e(f"v_mul_f32 v3, {0x3acccccd:#x}, v3")
        bf16r(a, 96, 2); bf16r(a, 3, 3)
        a.e(f"v_add_f32 v3, {0x3727c5ac:#x}, v3")
        bf16r(a, 3, 3)
        a.e("v_sqrt_f32 v3, v3"); a.e("s_nop 0")
        bf16r(a, 3, 3)
        a.e("v_rcp_f32 v98, v3")
        weave(3, w0)
        a.e(f"buffer_load_dword v97, v101, {sr(S_3,4)}, 0 offen sc1"); vm.issue('nonce')
        hst(1, 2); vm.wait(('st', 2)); hst(1, 1); a.e("s_barrier")
        def colsum_mfma():
            if glu:
                a.e("v_and_b32 v2, 15, v1")
                for q in range(4):
                    a.e(f"v_cmp_eq_u32 vcc, {2*q}, v2"); a.e("v_mov_b32 v3, 0x3f80"); a.e("s_nop 0"); a.e(f"v_cndmask_b32 v{88+q}, 0, v3, vcc")
                    a.e(f"v_cmp_eq_u32 vcc, {2*q+1}, v2"); a.e("v_mov_b32 v3, 0x3f800000"); a.e("s_nop 0"); a.e(f"v_cndmask_b32 v{88+q}, v{88+q}, v3, vcc")
                a.e("s_nop 1")
                for i in range(10):
                    a.e(f"v_mfma_f32_16x16x32_bf16 {vr(CA,4)}, v[88:91], {vr(CSD+4*i,4)}, {'0' if i == 0 else vr(CA,4)}")
            else:
                a.e("v_mov_b32 v3, 0x3f803f80")
                a.e("v_cmp_gt_u32 vcc, 32, v1"); a.e("s_nop 1")
                for q in range(4):
                    a.e(f"v_mov_b32 v{88+q}, v3"); a.e(f"v_cndmask_b32 v{92+q}, 0, v3, vcc")
                a.e("s_nop 1")
                for rs_ in range(2):
                    for i in range(3):
                        a.e(f"v_mfma_f32_16x16x32_bf16 {vr(CA+4*rs_,4)}, {vr(88 if i < 2 else 92,4)}, {vr(CSD+4*(3*rs_+i),4)}, {'0' if i == 0 else vr(CA+4*rs_,4)}")
        w0 = len(a.lines); colsum_mfma(); weave(4, w0)
        hst(2, 2); vm.wait(('st', 3)); hst(2, 1); a.e("s_barrier")
        srd(a, S_3, P_DBG, P_DBG + 1, 0, 256)
        a.e("s_mov_b32 s80, 0")
        a.lab(L(tg + '_np'))
        a.e(f"v_readfirstlane_b32 s{NONCE}, v97")
        a.e("s_nop 3")
        a.e(f"s_cmp_lg_u32 s{NONCE}, 0")
        a.e(f"s_cbranch_scc1 {L(tg+'_np_ok')}")
        a.e("s_add_u32 s80, s80, 1"); a.e(f"s_cmp_lt_u32 s80, {SPIN:#x}")
        a.e(f"s_cbranch_scc0 {L(tg+'_np_ok')}")
        a.e(f"buffer_load_dword v97, v101, {sr(S_3,4)}, 0 offen sc1")
        a.e("s_waitcnt vmcnt(0)")
        a.e(f"s_branch {L(tg+'_np')}")
        a.lab(L(tg + '_np_ok'))
        a.e(f"v_mov_b32 v2, {T_NONCE:#x}"); a.e("ds_write_b32 v2, v97")
        a.e("v_mov_b32 v99, v97")
        a.e("v_lshlrev_b32 v3, 4, v100")
        a.e("s_mov_b32 exec_lo, 1"); a.e("s_mov_b32 exec_hi, 1")
        a.e(f"buffer_store_dwordx4 v[96:99], v3, {sr(S_SY,4)}, 0 offen sc1")
        a.e("s_mov_b64 exec, -1")
        if glu:
            a.e("s_lshl_b32 s80, s7, 4"); a.e("s_lshl_b32 s81, s6, 1"); a.e("s_add_u32 s80, s80, s81"); a.e("s_and_b32 s81, s14, 1"); a.e("s_add_u32 s80, s80, s81")
            a.e("s_mul_i32 s80, s80, 1280"); a.e("s_lshr_b32 s81, s14, 1"); a.e("s_mul_i32 s81, s81, 640"); a.e("s_add_u32 s80, s80, s81")
            a.e(f"s_add_u32 s80, s80, {CP_O:#x}")
            a.e("v_and_b32 v3, 15, v1"); a.e("v_lshlrev_b32 v3, 6, v3"); a.e("v_lshrrev_b32 v4, 4, v1"); a.e("v_lshl_add_u32 v3, v4, 5, v3")
            for q in range(2):
                a.e(f"v_mov_b32 v{XU+4*q}, v{CA+2*q}"); a.e(f"v_mov_b32 v{XU+4*q+1}, v97")
                a.e(f"v_mov_b32 v{XU+4*q+2}, v{CA+2*q+1}"); a.e(f"v_mov_b32 v{XU+4*q+3}, v97")
            a.e("s_mov_b64 exec, 0x03ff03ff")
            for q in range(2):
                a.e(f"buffer_store_dwordx4 {vr(XU+4*q,4)}, v3, {sr(S_SY,4)}, s80 offen offset:{16*q} sc1")
            a.e("s_mov_b64 exec, -1")
        else:
            a.e("s_lshl_b32 s80, s7, 4"); a.e("s_lshl_b32 s81, s6, 1"); a.e("s_add_u32 s80, s80, s81")
            a.e("s_mul_i32 s80, s80, 1280"); a.e("s_lshl_b32 s81, s14, 8"); a.e("s_add_u32 s80, s80, s81")
            a.e(f"s_add_u32 s80, s80, {CP_O:#x}")
            a.e("v_lshlrev_b32 v3, 3, v1")
            a.e(f"v_mov_b32 v{CA+1}, v97"); a.e(f"v_mov_b32 v{CA+5}, v97")
            a.e("s_mov_b64 exec, 0xffff")
            a.e(f"buffer_store_dwordx2 {vr(CA,2)}, v3, {sr(S_SY,4)}, s80 offen sc1")
            a.e(f"buffer_store_dwordx2 {vr(CA+4,2)}, v3, {sr(S_SY,4)}, s80 offen offset:128 sc1")
            a.e("s_mov_b64 exec, -1")
        vm.issue('pub', 3)
        dma(5)
        hst(3, 2); vm.wait(('st', 4)); hst(3, 1); a.e("s_barrier")
        if wpf == 1:
            a.e("s_and_b32 s80, s3, 1"); a.e("s_lshl_b32 s80, s80, 2"); a.e("s_and_b32 s81, s4, 3"); a.e("s_add_u32 s80, s80, s81")
            a.e("s_lshr_b32 s81, s4, 2"); a.e("s_lshl_b32 s81, s81, 2"); a.e("s_add_u32 s81, s81, s14")
            srd(a, S_1, P_WD, P_WD + 1, 0, 1728 * 1280)
            a.e("v_and_b32 v2, 31, v1"); a.e("s_mul_i32 s82, s81, 54"); a.e("v_add_u32 v2, s82, v2"); a.e("v_mul_u32_u24 v2, 1280, v2")
            a.e("v_lshrrev_b32 v3, 5, v1"); a.e("v_lshl_add_u32 v40, v3, 7, v2"); a.e("s_mul_i32 s8, s80, 160"); a.e(f"s_add_u32 s9, s8, {22*1280}")
            a.e("v_min_u32 v2, 49, v1"); a.e("s_mul_i32 s82, s81, 50"); a.e("v_add_u32 v2, s82, v2"); a.e("s_mov_b32 s82, 0xcccccccd")
            a.e("v_mul_hi_u32 v3, v2, s82"); a.e("v_lshrrev_b32 v3, 3, v3"); a.e("v_mul_u32_u24 v4, 10, v3"); a.e("v_sub_u32 v4, v2, v4")
            a.e("s_cmp_lt_u32 s81, 16")
            a.e(f"s_cselect_b32 s{S_2}, s{P_CRE}, s{P_CIM}"); a.e(f"s_cselect_b32 s{S_2+1}, s{P_CRE+1}, s{P_CIM+1}")
            a.e(f"s_mov_b32 s{S_2+2}, {640*1280:#x}"); a.e(f"s_mov_b32 s{S_2+3}, 0x00020000")
            a.e("s_cselect_b32 s82, 0, 80"); a.e("v_subrev_u32 v3, s82, v3")
            a.e("v_mul_u32_u24 v3, 1280, v3"); a.e("v_lshl_add_u32 v41, v4, 7, v3"); a.e(f"s_mul_i32 s10, s80, {80*1280}")
        if wpf == 2:
            a.e("s_lshl_b32 s81, s2, 2"); a.e("s_add_u32 s81, s81, s14")
            a.e("s_sub_u32 s82, s81, 576"); a.e("s_sub_u32 s83, s81, 790")
            a.e("s_cmp_lt_u32 s81, 790")
            a.e(f"s_cselect_b32 s{S_2}, s{P_CRE}, s{P_CIM}"); a.e(f"s_cselect_b32 s{S_2+1}, s{P_CRE+1}, s{P_CIM+1}"); a.e("s_cselect_b32 s82, s82, s83")
            a.e(f"s_mov_b32 s{S_2+2}, {640*1280:#x}")
            a.e("s_cmp_lt_u32 s81, 576")
            a.e(f"s_cselect_b32 s{S_2}, s{P_WD}, s{S_2}"); a.e(f"s_cselect_b32 s{S_2+1}, s{P_WD+1}, s{S_2+1}"); a.e("s_cselect_b32 s82, s81, s82")
            a.e(f"s_cselect_b32 s{S_2+2}, {1728*1280:#x}, s{S_2+2}"); a.e(f"s_mov_b32 s{S_2+3}, 0x00020000")
            a.e(f"s_mul_i32 s10, s82, {30*128}"); a.e("v_min_u32 v2, 29, v1"); a.e("v_lshlrev_b32 v41, 7, v2")
        dma(6)
        if wpf == 1: a.e(f"buffer_load_dword v42, v40, {sr(S_1,4)}, s8 offen"); vm.issue('t')
        if wpf == 2: a.e(f"buffer_load_dword v44, v41, {sr(S_2,4)}, s10 offen"); vm.issue('t')
        hst(4, 2); vm.wait(('st', 5)); hst(4, 1); a.e("s_barrier")
        dma(7)
        if wpf == 1: a.e(f"buffer_load_dword v43, v40, {sr(S_1,4)}, s9 offen"); vm.issue('t')
        hst(5, 2); vm.wait(('st', 6)); hst(5, 1); a.e("s_barrier")
        dma(8)
        if wpf == 1: a.e(f"buffer_load_dword v44, v41, {sr(S_2,4)}, s10 offen"); vm.issue('t')
        vm.wait(('st', 7)); a.e("s_barrier")
        dma(9)
        a.e("s_lshl_b32 s80, s6, 8"); a.e("s_lshl_b32 s81, s14, 6"); a.e("s_add_u32 s80, s80, s81")
        a.e("v_add_u32 v4, s80, v1"); a.e("v_lshlrev_b32 v4, 4, v4")
        NP = 16 if glu else 8
        pstr = 1280 if glu else 2560
        a.e(f"s_mul_i32 s9, s7, {16*1280}"); a.e(f"s_add_u32 s9, s9, {CP_O:#x}")
        if glu:
            a.e("s_mul_i32 s81, s14, 40"); a.e("v_min_u32 v5, 39, v1"); a.e("v_add_u32 v5, s81, v5")
        else:
            a.e("s_lshl_b32 s81, s14, 5"); a.e("v_and_b32 v5, 31, v1"); a.e("v_add_u32 v5, s81, v5")
        a.e("v_lshlrev_b32 v6, 3, v5")
        def gather():
            a.e(f"buffer_load_dwordx4 v[8:11], v4, {sr(S_SY,4)}, 0 offen sc1")
            for p in range(NP):
                a.e(f"s_add_u32 s81, s9, {p*pstr}")
                a.e(f"buffer_load_dwordx2 {vr(12+2*p,2)}, v6, {sr(S_SY,4)}, s81 offen sc1")
        gather(); vm.issue('g', NP + 1)
        hst(7, 2); vm.wait(('st', 8)); hst(7, 1); a.e("s_barrier")
        stamp_at(2)
        a.e("s_mov_b32 s80, 0")
        a.lab(L(tg + '_gp'))
        a.e("s_waitcnt vmcnt(0)")
        a.e(f"v_xor_b32 v2, s{NONCE}, v9"); a.e(f"v_xor_b32 v3, s{NONCE}, v11"); a.e("v_or_b32 v2, v2, v3")
        for p in range(NP):
            a.e(f"v_xor_b32 v3, s{NONCE}, v{13+2*p}"); a.e("v_or_b32 v2, v2, v3")
        a.e("v_cmp_ne_u32 vcc, 0, v2")
        a.e("s_cmp_eq_u64 vcc, 0")
        a.e(f"s_cbranch_scc1 {L(tg+'_gp_ok')}")
        a.e("s_add_u32 s80, s80, 1"); a.e(f"s_cmp_lt_u32 s80, {SPIN:#x}")
        a.e(f"s_cbranch_scc0 {L(tg+'_gp_ok')}")
        a.e("s_sleep 2")
        gather()
        a.e(f"s_branch {L(tg+'_gp')}")
        a.lab(L(tg + '_gp_ok'))
        vm.q = []
        k2map()
        for p in range(1, NP): a.e(f"v_add_f32 v12, v12, v{12+2*p}")
        a.e("v_lshlrev_b32 v5, 2, v5"); a.e(f"v_add_u32 v5, {T_CS:#x}, v5")
        a.e("ds_write_b32 v5, v12")
        a.e("s_lshl_b32 s81, s14, 6")
        if glu:
            a.e("v_add_u32 v5, s81, v1"); a.e("v_lshlrev_b32 v5, 3, v5"); a.e(f"v_add_u32 v5, {T_STAT:#x}, v5")
            a.e("v_mov_b32 v9, v10")
            a.e("ds_write_b64 v5, v[8:9]")
        else:
            a.e("v_and_b32 v5, 32, v1"); a.e("v_bfe_u32 v6, v1, 3, 1"); a.e("v_lshl_or_b32 v5, v6, 4, v5")
            a.e("v_and_b32 v6, 7, v1"); a.e("v_lshl_or_b32 v5, v6, 1, v5"); a.e("v_bfe_u32 v6, v1, 4, 1"); a.e("v_or_b32 v5, v5, v6")
            a.e("v_add_u32 v5, s81, v5"); a.e("v_lshlrev_b32 v5, 2, v5"); a.e(f"v_add_u32 v5, {T_STAT:#x}, v5")
            a.e("ds_write_b32 v5, v8"); a.e("ds_write_b32 v5, v10 offset:1024")
        a.e("s_waitcnt lgkmcnt(0)")
        a.e("s_barrier")
        S_WD, S_CR, S_CI = S_1, S_2, S_WB
        srd(a, S_WD, P_WD, P_WD + 1, 0, 1728 * 1280)
        srd(a, S_CR, P_CRE, P_CRE + 1, 0, 640 * 1280)
        srd(a, S_CI, P_CIM, P_CIM + 1, 0, 640 * 1280)
        a.e("s_mov_b32 s81, 0xcccccccd")
        for jj in range(5):
            a.e(f"v_add_u32 v2, {64*jj}, v1"); a.e("v_mul_hi_u32 v3, v2, s81"); a.e("v_lshrrev_b32 v3, 3, v3")
            a.e("v_mul_u32_u24 v6, 10, v3"); a.e("v_sub_u32 v6, v2, v6"); a.e("v_mul_u32_u24 v3, 1280, v3")
            a.e(f"v_lshl_add_u32 v{8+jj}, v6, 4, v3")
            if jj & 3: a.e(f"v_subrev_u32 v{8+jj}, {(jj&3)*1024}, v{8+jj}")
        a.e("v_lshrrev_b32 v2, 3, v1"); a.e("v_and_b32 v3, 7, v1"); a.e("v_xor_b32 v3, v3, v2")
        a.e("s_and_b32 s80, s14, 1"); a.e("s_mul_i32 s80, s80, 40"); a.e("v_add_u32 v2, s80, v2"); a.e("v_mul_u32_u24 v2, 1280, v2")
        a.e("v_lshl_add_u32 v2, v3, 4, v2")
        for jj in range(5): a.e(f"v_add_u32 v{16+jj}, {jj*10240 - (jj&3)*1024}, v2")
        a.e("s_mul_i32 s7, s13, 160")
        k2rot(0); a.e("s_add_u32 s0, s0, s14"); a.e("s_sub_u32 s80, s0, 54"); a.e("s_cmp_ge_u32 s0, 54"); a.e("s_cselect_b32 s0, s80, s0")
        def wd_soff():
            a.e(f"s_mul_i32 s82, s0, {32*1280}"); a.e("s_add_u32 s82, s82, s7")
            a.e("s_add_u32 s0, s0, 4"); a.e("s_sub_u32 s80, s0, 54"); a.e("s_cmp_ge_u32 s0, 54"); a.e("s_cselect_b32 s0, s80, s0")
        a.e(f"s_mul_i32 s8, s13, {80*1280}"); a.e("s_lshr_b32 s80, s14, 1"); a.e("s_lshl_b32 s80, s80, 7"); a.e("s_add_u32 s8, s8, s80")
        a.e("s_mul_i32 s6, s14, 5120")
        def five(vb, S, soff_s, base):
            a.e(f"s_add_u32 m0, s6, {base}"); a.e("s_nop 0")
            for j in range(5):
                if j == 4: a.e(f"s_add_u32 m0, s6, {base+4096}"); a.e("s_nop 0")
                a.e(f"buffer_load_dwordx4 v{vb+j}, {sr(S,4)}, {soff_s} offen offset:{(j&3)*1024} lds")
        def issue(s_):
            base = ((s_ + SLOT0) % RING) * SPS * 5120
            if s_ < 13:
                wd_soff(); five(8, S_WD, "s82", base)
            elif s_ == 13:
                a.e("s_cmp_ge_u32 s14, 2"); a.e(f"s_cbranch_scc1 {L(tg+'_m13')}")
                wd_soff(); five(8, S_WD, "s82", base)
                a.e(f"s_branch {L(tg+'_m13e')}")
                a.lab(L(tg + '_m13'))
                a.e("s_sub_u32 s82, s8, 128"); five(16, S_CR, "s82", base)
                a.lab(L(tg + '_m13e'))
            else:
                p0 = 2 * (s_ - 14) + 1
                if p0 + 1 < 10 or p0 >= 10:
                    skip = None
                    if p0 + 1 >= 20:
                        skip = L(tg + '_sk23'); a.e("s_cmp_ge_u32 s14, 2"); a.e(f"s_cbranch_scc1 {skip}")
                    a.e(f"s_add_u32 s82, s8, {(p0 % 10)*128}"); five(16, S_CR if p0 < 10 else S_CI, "s82", base)
                    if skip: a.lab(skip)
                else:
                    a.e("s_cmp_ge_u32 s14, 2"); a.e(f"s_cbranch_scc1 {L(tg+'_m18')}")
                    a.e(f"s_add_u32 s82, s8, {9*128}"); five(16, S_CR, "s82", base)
                    a.e(f"s_branch {L(tg+'_m18e')}")
                    a.lab(L(tg + '_m18'))
                    a.e("s_sub_u32 s82, s8, 128"); five(16, S_CI, "s82", base)
                    a.lab(L(tg + '_m18e'))
            vm.issue(('s', s_), 5)
        issue(0); issue(1)
        stamp_at(3)
        a.e("s_barrier")
        if not glu:
            a.e("s_barrier"); a.e("s_barrier"); a.e("s_barrier")
        elif dly: a.e("s_barrier")
        for s in range(2, RING): issue(s)
        stamp_at(4)
        for s in range(NSTG):
            if s == NSTG - 1: vm.wait_all()
            else: vm.wait(('s', s))
            a.e("s_barrier")
            if s >= 2 and s + RING - 2 < NSTG and not (x2 & 2): issue(s + RING - 2)
        stamp_at(7)
        stamp_out(0, 8)
        a.e("s_endpgm")
    a.lab(L('hglu')); a.c("================ helper GLU"); helper(True)
    a.lab(L('hssm')); a.c("================ helper SSM"); helper(False)
    a.lab(done)
    a.e("s_endpgm")
    return kernel_desc(name, 256, 102, 256)

def build(fn, **kw):
    a = Asm()
    hdr = open("parallel_sum__ssm_conv_s5__glu_gated_bilinear__prompt.s.ref").read().split("\n")
    for l in hdr:
        if l.startswith(";") and "@launch" not in l and "Override" not in l and "grid=ceil" not in l: a.raw(l)
    single = kw.pop("single", 0)
    name = "parallel_sum__ssm_conv_s5__glu_gated_bilinear__prompt_kernel"
    if single: a.raw(f"; @launch grid=(256,1,1) block=(512,1,1) lds={LDS_BYTES}")
    else: a.raw(f"; @launch kernel={name} grid=(256,1,1) block=(512,1,1) lds={LDS_BYTES}")
    a.raw('.amdgcn_target "amdgcn-amd-amdhsa--gfx950"\n.text')
    of = {0: "", 1: "sc1", 2: "nt"}[kw.pop("of", 0)]
    d = gen(a, name, outflag=of, **kw)
    a.raw('.section .rodata,"a"\n.p2align 6')
    a.raw(d)
    open(fn, "w").write(a.text())
if __name__ == "__main__":
    kw = {k: int(v) for k, v in (kv.split("=") for kv in sys.argv[2:])}
    build(sys.argv[1], **kw)
```
